```python
import torch

def _softmax(x, axis=-1):
    return torch.softmax(x, dim=axis)
def _gelu(x):
    return torch.nn.functional.gelu(x, approximate="tanh")
def _silu(x):
    return torch.nn.functional.silu(x)
def _sigmoid(x):
    return torch.sigmoid(x)
def _layernorm(x, axis=-1, eps=1e-5):
    m = x.mean(dim=axis, keepdim=True)
    v = x.var(dim=axis, keepdim=True, unbiased=False)
    return (x - m) / torch.sqrt(v + eps)
def _scatter_add(tgt, idx, src, axis=0):
    return tgt.clone().index_add_(axis, idx, src)
def _segment_sum(src, seg, n):
    out = torch.zeros((n,) + src.shape[1:], dtype=src.dtype)
    return out.index_add_(0, seg, src)
def _pad(x, pw):
    flat = tuple(v for pair in reversed(pw) for v in pair)
    return torch.nn.functional.pad(x, flat)

kernel_name = 'parallel_sum__ssm_conv_h3__dense_activation_squared_relu__prompt'

def setup_inputs():

    _w = (lambda a: (lambda t: t.to(torch.bfloat16) if t.is_floating_point() else t)(torch.as_tensor(a)))
    def _A_setup():
        B, S, D = 1, 2048, 512
        ks = 4
        return {
            "q": _w((lambda *s: torch.randn(*s, dtype=torch.bfloat16) * 0.05)(B, S, D)),
            "k": _w((lambda *s: torch.randn(*s, dtype=torch.bfloat16) * 0.8)(B, S, D)),
            "v": _w((lambda *s: torch.randn(*s, dtype=torch.bfloat16) * 0.8)(B, S, D)),
            "shift_k": _w((lambda *s: torch.randn(*s, dtype=torch.bfloat16) * 0.8)(D, ks) * 0.5),
            "ssm_k": _w((lambda *s: torch.randn(*s, dtype=torch.bfloat16) * 0.8)(D, S) * (1.0 / S ** 0.5)),
            "ssm_D": _w((lambda *s: torch.randn(*s, dtype=torch.bfloat16) * 0.8)(D)),
        }
    _A_in = _A_setup()

    def _B_setup():
        B, S, D, F = 1, 2048, 512, 1792
        return {
            "x": _w((lambda *s: torch.randn(*s, dtype=torch.bfloat16) * 0.05)(B, S, D)),
            "w1": _w((lambda *s: torch.randn(*s, dtype=torch.bfloat16) * 0.05)(D, F)),
            "b1": _w((lambda *s: torch.randn(*s, dtype=torch.bfloat16) * 0.2)(F)),
            "w2": _w((lambda *s: torch.randn(*s, dtype=torch.bfloat16) * 0.05)(F, D)),
            "b2": _w((lambda *s: torch.randn(*s, dtype=torch.bfloat16) * 1.6)(D)),
        }
    _B_in = _B_setup()

    return {
        "A_q": _A_in["q"],
        "A_k": _A_in["k"],
        "A_v": _A_in["v"],
        "A_shift_k": _A_in["shift_k"],
        "A_ssm_k": _A_in["ssm_k"],
        "A_ssm_D": _A_in["ssm_D"],
        "B_x": _B_in["x"],
        "B_w1": _B_in["w1"],
        "B_b1": _B_in["b1"],
        "B_w2": _B_in["w2"],
        "B_b2": _B_in["b2"],
    }

def reference(A_q, A_k, A_v, A_shift_k, A_ssm_k, A_ssm_D, B_x, B_w1, B_b1, B_w2, B_b2):
    def _A_ref(q, k, v, shift_k, ssm_k, ssm_D):
        B, S, D = q.shape
        ks = shift_k.shape[-1]
        k_pad = _pad(k, ((0, 0), (ks - 1, 0), (0, 0)))
        k_shift = torch.zeros_like(k)
        for t in range(ks):
            k_shift = k_shift + k_pad[:, t:t + S, :] * shift_k[:, ks - 1 - t][None, None, :]
        kv = k_shift * v
        L = 2 * S
        kv_pad = _pad(kv, ((0, 0), (0, S), (0, 0)))
        kf_pad = _pad(ssm_k, ((0, 0), (0, S)))
        kv_f = (lambda x, axes=(-2,-1): torch.fft.rfft2(x.float(), dim=axes))(kv_pad[:, None, :, :], axes=(1, 2))
        kf_f = (lambda x, axes=(-2,-1): torch.fft.rfft2(x.float(), dim=axes))(kf_pad[:, None, :], axes=(1, 2))
        kf_f = (lambda x, *d: x.permute(*d))(kf_f, 1, 2, 0)
        y_f = kv_f * kf_f[None, :, :, :]
        y = (lambda x, s, axes=(-2,-1): torch.fft.irfft2(x, s=s, dim=axes).to(torch.bfloat16))(y_f, (1, L), axes=(1, 2))[:, 0, :S, :]
        y = y + kv * ssm_D[None, None, :]
        return q * y

    def _B_ref(x, w1, b1, w2, b2):
        h = torch.einsum("bsd,df->bsf", x, w1) + b1
        zero = torch.zeros_like(h)
        r = torch.where(h > zero, h, zero)
        h = r * r
        out = torch.einsum("bsf,fd->bsd", h, w2) + b2
        return out

    x = A_q
    xn = _layernorm(x, axis=-1)
    return x + _A_ref(xn, A_k, A_v, A_shift_k, A_ssm_k, A_ssm_D) + _B_ref(xn, B_w1, B_b1, B_w2, B_b2)
```

```python
import re

def v(i, n=1):  return f"v{i}" if n == 1 else f"v[{i}:{i+n-1}]"
def a(i, n=1):  return f"a{i}" if n == 1 else f"a[{i}:{i+n-1}]"
def s(i, n=1):  return f"s{i}" if n == 1 else f"s[{i}:{i+n-1}]"

_REG = re.compile(r"(?<![\w.])([vas])(\d+)(?![\w\[])|(?<![\w.])([vas])\[(\d+):(\d+)\]")
def regs_of(op):
    out = []
    op = op.strip()
    for m in _REG.finditer(op):
        if m.group(1): out.append((m.group(1), int(m.group(2))))
        else:
            for k in range(int(m.group(4)), int(m.group(5)) + 1): out.append((m.group(3), k))
    if re.search(r"\bvcc\b", op): out += [("s", "vcc")]
    if re.search(r"\bvcc_lo\b", op): out += [("s", "vcc")]
    if re.search(r"\bexec\b", op): out += [("s", "exec")]
    if re.search(r"\bm0\b", op): out += [("s", "m0")]
    return out

TRANS = ("v_exp_f32", "v_log_f32", "v_rcp_f32", "v_rsq_f32", "v_sqrt_f32", "v_sin_f32", "v_cos_f32", "v_rcp_iflag_f32")

class Ins:
    __slots__ = ("text", "mn", "ops", "kind", "wr", "rd", "passes", "srcC", "dpp")
    def __init__(self, text):
        self.text = text
        t = text.split(";")[0].strip()
        parts = t.split(None, 1)
        self.mn = parts[0]
        rest = parts[1] if len(parts) > 1 else ""
        ops, depth, cur = [], 0, ""
        for ch in rest:
            if ch == "[": depth += 1
            if ch == "]": depth -= 1
            if ch == "," and depth == 0: ops.append(cur.strip()); cur = ""
            else: cur += ch
        if cur.strip(): ops.append(cur.strip())
        self.ops = ops
        mn = self.mn
        self.passes = 0; self.srcC = []; self.dpp = ("dpp" in mn) or ("quad_perm" in t) or ("row_" in t) or ("wave_sh" in t) or ("wave_ro" in t)
        self.wr, self.rd = [], []
        R = regs_of
        if mn.startswith("v_mfma"):
            self.kind = "mfma"
            self.passes = 8 if "32x32" in mn else 4
            self.wr = R(ops[0]); self.rd = R(ops[1]) + R(ops[2]) + R(ops[3]); self.srcC = R(ops[3])
        elif mn.startswith("v_cmp"):
            self.kind = "valu"; self.wr = R(ops[0]); self.rd = sum((R(o) for o in ops[1:]), [])
        elif mn in ("v_readfirstlane_b32", "v_readlane_b32"):
            self.kind = "valu"; self.wr = R(ops[0]); self.rd = sum((R(o) for o in ops[1:]), [])
        elif mn.startswith("v_permlane") and "swap" in mn:
            self.kind = "valu"; self.wr = R(ops[0]) + R(ops[1]); self.rd = R(ops[0]) + R(ops[1])
        elif mn.startswith("v_"):
            self.kind = "valu"
            n_dst = 2 if (mn.startswith(("v_add_co", "v_sub_co", "v_addc_co", "v_subb_co", "v_div_scale", "v_mad_u64"))) else 1
            self.wr = sum((R(o) for o in ops[:n_dst]), []); self.rd = sum((R(o) for o in ops[n_dst:]), [])
            if mn.startswith(("v_fmac", "v_pk_fmac", "v_dot2c", "v_writelane", "v_accvgpr_write")) and not mn.startswith("v_accvgpr_write"):
                self.rd += R(ops[0])
            if self.dpp or "op_sel" in t or "sdwa" in mn: self.rd += R(ops[0])
            if mn.startswith("v_cndmask") and len(ops) == 3: self.rd.append(("s", "vcc"))
        elif mn.startswith("ds_"):
            self.kind = "ds"
            if mn.startswith(("ds_read", "ds_bpermute", "ds_permute", "ds_swizzle")):
                self.wr = R(ops[0]); self.rd = sum((R(o) for o in ops[1:]), [])
            else:
                self.rd = sum((R(o) for o in ops), [])
        elif mn.startswith(("global_", "buffer_", "flat_")):
            self.kind = "vmem"
            if "load_lds" in mn or re.search(r"\blds\b", t):
                self.rd = sum((R(o) for o in ops), []) + [("s", "m0")]
            elif "load" in mn:
                self.wr = R(ops[0]); self.rd = sum((R(o) for o in ops[1:]), [])
            elif "atomic" in mn and re.search(r"\bsc0\b", t):
                if mn.startswith("global"):
                    self.wr = R(ops[0]); self.rd = sum((R(o) for o in ops[1:]), [])
                else:
                    self.wr = R(ops[0]); self.rd = sum((R(o) for o in ops), [])
            else:
                self.rd = sum((R(o) for o in ops), [])
        elif mn.startswith("s_"):
            self.kind = "salu"
            if mn.startswith(("s_cmp", "s_cbranch", "s_branch", "s_waitcnt", "s_barrier", "s_nop", "s_endpgm", "s_setprio", "s_sleep", "s_bitcmp")):
                self.rd = sum((R(o) for o in ops), [])
            else:
                self.wr = R(ops[0]) if ops else []; self.rd = sum((R(o) for o in ops[1:]), [])
                if "saveexec" in mn: self.wr.append(("s", "exec"))
        else:
            raise ValueError("unknown instr: " + text)
    def states(self):
        if self.mn == "s_nop": return int(self.ops[0], 0) + 1
        return 1

def need(p, c):
    n = 0
    pw = set(p.wr); cr = set(c.rd); cw = set(c.wr)
    vec = lambda S: {r for r in S if r[0] in "va"}
    sc = lambda S: {r for r in S if r[0] == "s"}
    if p.kind == "valu":
        if c.kind == "mfma" and vec(pw) & cr: n = max(n, 2)
        if c.kind == "vmem" and sc(pw) & cr: n = max(n, 5)
        if c.kind == "valu":
            if sc(pw) & cr:
                if c.mn in ("v_readlane_b32", "v_writelane_b32"): n = max(n, 4)
                else: n = max(n, 2)
            if vec(pw) & cr:
                if c.mn in ("v_readfirstlane_b32", "v_readlane_b32"): n = max(n, 1)
                if c.dpp or c.mn.startswith("v_permlane"): n = max(n, 2)
                if p.mn in TRANS and c.mn not in TRANS: n = max(n, 1)
                if "op_sel" in p.text or "sdwa" in p.mn: n = max(n, 1)
            if ("s", "exec") in pw and c.dpp: n = max(n, 5)
        if c.kind == "mfma" and ("s", "exec") in pw: n = max(n, 4)
        if c.kind == "salu" and sc(pw) & cr: n = max(n, 1)
    if p.kind == "valu" and p.mn.startswith("v_dot"):
        if c.kind in ("valu", "mfma", "vmem", "ds") and vec(pw) & (cr | cw):
            same = (c.mn == p.mn)
            if same:
                ab = set(regs_of(c.ops[1]) + regs_of(c.ops[2]))
                if pw & ab: n = max(n, 3)
            else: n = max(n, 3)
    if p.kind == "mfma":
        P = p.passes
        if c.kind == "mfma":
            cC = set(c.srcC); AB = set(regs_of(c.ops[1]) + regs_of(c.ops[2]))
            if pw & cC:
                if not (pw == cC and c.passes == P): n = max(n, P + 2)
            if pw & AB: n = max(n, P + 4)
            if pw & cw and not (pw & cC): n = max(n, P + 2)
        elif c.kind in ("valu", "vmem", "ds"):
            if pw & (cr | cw): n = max(n, P + 4)
            if c.kind == "valu" and set(p.srcC) & cw: n = max(n, P - 1)
    if p.kind == "salu":
        if ("s", "m0") in pw and c.kind == "vmem" and ("s", "m0") in cr: n = max(n, 1)
    if p.kind == "vmem" and ("store" in p.mn or "atomic" in p.mn) and ("x4" in p.mn or "x3" in p.mn):
        if vec(set(p.rd)) & cw: n = max(n, 2)
    return n

class Asm:
    def __init__(self):
        self.items = []
        self.vmlist = []
    def __call__(self, text):
        for line in text.split("\n"):
            t = line.strip()
            if not t or t.startswith(";"):
                if t: self.items.append(("r", "    " + t))
                continue
            if t.endswith(":"): self.items.append(("l", t[:-1])); continue
            self.items.append(("i", Ins(t)))
    def label(self, l): self.items.append(("l", l))
    def vm(self, tag, text):
        self(text); self.vmlist.append(tag)
    def vm_younger(self, tag):
        idx = max(i for i, t in enumerate(self.vmlist) if t == tag)
        return len(self.vmlist) - 1 - idx
    def wait_vm(self, tag, extra=""):
        n = self.vm_younger(tag)
        assert n <= 63, (tag, n)
        self(f"s_waitcnt vmcnt({n}) {extra}".strip())
        return n
    def raw(self, t): self.items.append(("r", t))
    def comment(self, t): self.items.append(("r", "    ; " + t))
    def fix_hazards(self, window=24):
        out = []
        hist = []
        labels = {}
        inserted = 0
        for kind, it in self.items:
            if kind != "i":
                if kind == "l": labels[it] = len(out)
                out.append((kind, it)); continue
            req = 0; dist = 0
            for p in reversed(hist[-window:]):
                r = need(p, it) - dist
                req = max(req, r)
                dist += p.states()
                if dist >= 20: break
            while req > 0:
                k = min(req, 16)
                nop = Ins(f"s_nop {k-1}"); out.append(("i", nop)); hist.append(nop); req -= k; inserted += 1
            out.append(("i", it)); hist.append(it)
        ins_idx = [i for i, (k, _) in enumerate(out) if k == "i"]
        for i, (k, it) in enumerate(out):
            if k == "i" and it.mn.startswith(("s_cbranch", "s_branch")):
                tgt = it.ops[0]
                if tgt in labels:
                    lp = [j for j, (kk, x) in enumerate(out) if kk == "l" and x == tgt][0]
                    tail = [x for kk, x in out[max(0, i - 40):i + 1] if kk == "i"]
                    head = [x for kk, x in out[lp:lp + 40] if kk == "i"]
                    d_head = 0
                    for c in head:
                        dist = d_head
                        for p in reversed(tail):
                            if need(p, c) > dist:
                                raise RuntimeError(f"hazard across branch to {tgt}: {p.text} -> {c.text} need {need(p,c)} have {dist}")
                            dist += p.states()
                            if dist >= 20: break
                        d_head += c.states()
                        if d_head >= 20: break
        self.items = out
        return inserted
    def text(self):
        o = []
        for kind, it in self.items:
            if kind == "i": o.append("    " + it.text)
            elif kind == "l": o.append(it + ":")
            else: o.append(it)
        return "\n".join(o) + "\n"
    def maxreg(self):
        mv = ma = ms = -1
        for kind, it in self.items:
            if kind == "i":
                for r in it.wr + it.rd:
                    if isinstance(r[1], int):
                        if r[0] == "v": mv = max(mv, r[1])
                        if r[0] == "a": ma = max(ma, r[1])
                        if r[0] == "s": ms = max(ms, r[1])
        return mv, ma, ms

def kernel_text(name, asm, lds_note=""):
    asm.fix_hazards()
    mv, ma, ms = asm.maxreg()
    accum = ((mv + 1 + 3) // 4) * 4
    accum = max(accum, 4)
    nfv = accum + (ma + 1) if ma >= 0 else mv + 1
    body = f""".text
.globl {name}
.p2align 8
.type {name},@function
{name}:
{asm.text()}"""
    kd = f""".section .rodata,"a"
.p2align 6
.amdhsa_kernel {name}
  .amdhsa_next_free_vgpr {nfv}
  .amdhsa_next_free_sgpr {max(ms + 1, 16)}
  .amdhsa_accum_offset {accum}
  .amdhsa_group_segment_fixed_size 0
  .amdhsa_kernarg_size 112
  .amdhsa_user_sgpr_count 2
  .amdhsa_user_sgpr_kernarg_segment_ptr 1
  .amdhsa_system_sgpr_workgroup_id_x 1
  .amdhsa_float_denorm_mode_32 3
.end_amdhsa_kernel
"""
    return body, kd
```

```python
import sys
from asmgen import *
KN = "parallel_sum__ssm_conv_h3__dense_activation_squared_relu__prompt"
S, D, F = 2048, 512, 1792
WS_KVT  = 0
WS_YT   = 2 << 20
WS_H    = 4 << 20
H_BYTES = S*F*2
WS_STAT = 12 << 20
WS_CS   = WS_STAT + 65536
WS_FLAG = 13 << 20
F1, F2, F3, F4 = 0, 256, 512, 768
WS_STAMP = 64 << 20
P_Q, P_K, P_V, P_SK, P_HH, P_DD, P_BX, P_W1, P_B1, P_W2, P_B2, P_OUT, P_DBG, P_WS = [4+2*i for i in range(14)]
S_WAVE, S_NONCE = 32, 33
OOB = 0x7ff00000
STAMPS = False
NSTAMP = 11
def stamp(A, idx):
    if STAMPS: A(f"s_memrealtime s[{80+2*idx}:{81+2*idx}]")
def stamp_flush(A):
    if not STAMPS: return
    A("s_waitcnt lgkmcnt(0)")
    A(f"s_add_u32 s60, {s(P_WS)}, {WS_STAMP}"); A(f"s_addc_u32 s61, {s(P_WS+1)}, 0")
    A("s_lshl_b32 s62, s2, 9")
    A("v_lshrrev_b32 v4, 6, v0"); A("v_lshlrev_b32 v4, 7, v4"); A("v_add_u32 v4, s62, v4")
    for i in range(NSTAMP):
        A(f"v_mov_b32 v6, s{80+2*i}"); A(f"v_mov_b32 v7, s{81+2*i}")
        A(f"global_store_dwordx2 v4, v[6:7], s[60:61] offset:{8*i}")

def srd(A, r, base, size, off=0):
    if off:
        A(f"s_add_u32 {s(r)}, {s(base)}, {off}"); A(f"s_addc_u32 {s(r+1)}, {s(base+1)}, 0")
    else:
        A(f"s_mov_b32 {s(r)}, {s(base)}"); A(f"s_mov_b32 {s(r+1)}, {s(base+1)}")
    A(f"s_mov_b32 {s(r+2)}, {size}"); A(f"s_mov_b32 {s(r+3)}, 0x00020000")
def round_bf16(A, x):
    A(f"v_cvt_pk_bf16_f32 {v(x)}, {v(x)}, {v(x)}"); A(f"v_lshlrev_b32 {v(x)}, 16, {v(x)}")
_lbl = [0]
def newlabel(p):
    _lbl[0] += 1; return f"L_{p}_{_lbl[0]}"

SR_FLAG = 76
SPIN_LIMIT = 20000
def flag_issue(A, tag, vdst, vaddr):
    A.vm(tag, f"buffer_load_dword {v(vdst)}, {v(vaddr)}, {s(SR_FLAG,4)}, 0 offen sc1")
def flag_check(A, vdst, vaddr, name):
    ok = newlabel(name + "_ok"); lp = newlabel(name + "_spin")
    A(f"v_cmp_ne_u32 vcc, {s(S_NONCE)}, {v(vdst)}")
    A(f"s_cbranch_vccz {ok}")
    A("s_mov_b32 s60, 0")
    A.label(lp)
    A("s_sleep 2")
    A(f"buffer_load_dword {v(vdst)}, {v(vaddr)}, {s(SR_FLAG,4)}, 0 offen sc1")
    A("s_add_u32 s60, s60, 1")
    A("s_waitcnt vmcnt(0)")
    A(f"v_cmp_ne_u32 vcc, {s(S_NONCE)}, {v(vdst)}")
    A(f"s_cmp_gt_u32 s60, {SPIN_LIMIT}")
    A(f"s_cbranch_scc1 {ok}")
    A(f"s_cbranch_vccnz {lp}")
    A.label(ok)
def flag_set(A, vt):
    A(f"v_mov_b32 {v(vt)}, s61"); A(f"v_mov_b32 {v(vt+1)}, {s(S_NONCE)}")
    A("s_mov_b64 exec, 1")
    A.vm("flagset", f"buffer_store_dword {v(vt+1)}, {v(vt)}, {s(SR_FLAG,4)}, 0 offen sc1")
    A("s_mov_b64 exec, -1")
def nonce_issue(A, vt):
    A(f"v_mov_b32 {v(vt)}, 0")
    A.vm("nonce", f"global_load_dword {v(vt+1)}, {v(vt)}, {s(P_DBG,2)} sc1")
def nonce_check(A, vt):
    lp = newlabel("nonce"); ok = newlabel("nonce_ok")
    A(f"v_readfirstlane_b32 {s(S_NONCE)}, {v(vt+1)}")
    A(f"s_cmp_lg_u32 {s(S_NONCE)}, 0")
    A(f"s_cbranch_scc1 {ok}")
    A("s_mov_b32 s60, 0")
    A.label(lp)
    A("s_sleep 2")
    A(f"global_load_dword {v(vt+1)}, {v(vt)}, {s(P_DBG,2)} sc1")
    A("s_add_u32 s60, s60, 1")
    A("s_waitcnt vmcnt(0)")
    A(f"v_readfirstlane_b32 {s(S_NONCE)}, {v(vt+1)}")
    A(f"s_cmp_gt_u32 s60, {SPIN_LIMIT}")
    A(f"s_cbranch_scc1 {ok}")
    A(f"s_cmp_eq_u32 {s(S_NONCE)}, 0")
    A(f"s_cbranch_scc1 {lp}")
    A.label(ok)

G1_SLOT = 32768
CONV_COPY = 4160
CONV_HC   = 4*CONV_COPY
CONV_U    = 512 + 4096
LDS_HC = 0
LDS_U  = 2*CONV_HC
LDS_RED = LDS_U + 2*CONV_U
LDS_YO = LDS_RED + 16384
CONV_END = LDS_YO + 8192
G2_RING = 67072
G2_XT   = G2_RING + 4*14336
G2_YT   = G2_XT + 8192
G2_OT   = G2_YT + 8192
G2_XCH  = 0
LDS_CSR = 131072
LDS_TOTAL = G2_OT + 8192

def conv_pre(A):
    A(f"s_lshr_b32 s71, {s(S_WAVE)}, 1")
    A(f"s_and_b32 s72, {s(S_WAVE)}, 1")
    A("s_lshl_b32 s73, s2, 1"); A("s_add_u32 s73, s73, s71")
    A("s_lshl_b32 s74, s73, 12")
    A(f"s_add_u32 s36, {s(P_HH)}, s74"); A(f"s_addc_u32 s37, {s(P_HH+1)}, 0"); A("s_mov_b32 s38, 4096"); A("s_mov_b32 s39, 0x00020000")
    A("s_lshr_b32 s60, s2, 5"); A(f"s_add_u32 s60, s60, {F2}"); A("s_lshl_b32 s60, s60, 7")
    A("v_and_b32 v32, 31, v1"); A("v_lshlrev_b32 v32, 10, v32"); A("v_add_u32 v32, s60, v32")
    flag_issue(A, "F2", 33, 32)
    A("v_and_b32 v4, 127, v0"); A("v_lshlrev_b32 v5, 4, v4")
    A("v_subrev_u32 v6, 32, v5"); A("v_subrev_u32 v7, 16, v5")
    A(f"v_mov_b32 v8, {OOB}")
    A("v_cmp_gt_u32 vcc, 2, v4"); A("v_cndmask_b32 v9, v6, v8, vcc")
    A("v_cmp_gt_u32 vcc, 1, v4"); A("v_cndmask_b32 v10, v7, v8, vcc")
    A.vm("h", "buffer_load_dwordx4 v[160:163], v9, s[36:39], 0 offen")
    A.vm("h", "buffer_load_dwordx4 v[164:167], v10, s[36:39], 0 offen")
    A("v_add_u32 v6, 2048, v6"); A("v_add_u32 v7, 2048, v7")
    A.vm("h", "buffer_load_dwordx4 v[168:171], v6, s[36:39], 0 offen")
    A.vm("h", "buffer_load_dwordx4 v[172:175], v7, s[36:39], 0 offen")
    A("v_add_u32 v6, 2048, v6"); A("v_add_u32 v7, 2048, v7")
    A.vm("h", "buffer_load_dwordx4 v[176:179], v6, s[36:39], 0 offen")
    A.vm("h", "buffer_load_dwordx4 v[180:183], v7, s[36:39], 0 offen")
    srd(A, 40, P_DD, D*2)
    A("s_lshl_b32 s60, s73, 1"); A("v_mov_b32 v4, s60")
    A.vm("h", "buffer_load_ushort v60, v4, s[40:43], 0 offen")

def gen():
    A = Asm()
    A("s_cmp_ge_u32 s2, 256")
    A("s_cbranch_scc1 L_end")
    stamp(A, 0)
    A("s_load_dwordx16 s[4:19], s[0:1], 0")
    A("s_load_dwordx8 s[20:27], s[0:1], 64")
    A("s_load_dwordx4 s[28:31], s[0:1], 96")
    A("s_memrealtime s[34:35]")
    A("v_and_b32 v1, 63, v0")
    A("v_lshrrev_b32 v2, 6, v0")
    A("s_nop 0")
    A(f"v_readfirstlane_b32 {s(S_WAVE)}, v2")
    A("s_lshr_b32 s60, s2, 3"); A("s_and_b32 s61, s2, 7")
    A("v_and_b32 v12, 7, v1"); A("v_lshrrev_b32 v13, 3, v1"); A("v_lshl_add_u32 v13, v2, 3, v13")
    A("s_lshl_b32 s62, s60, 16"); A("s_lshl_b32 s63, s61, 7"); A("s_add_u32 s62, s62, s63")
    A("v_lshlrev_b32 v14, 13, v12"); A("v_lshl_add_u32 v14, v13, 2, v14"); A("v_add_u32 v14, s62, v14")
    A("v_add_u32 v15, 4096, v14"); A("v_subrev_u32 v16, 3072, v14")
    A(f"v_mov_b32 v18, {OOB}"); A("v_cmp_gt_u32 vcc, 3072, v14"); A("v_cndmask_b32 v16, v16, v18, vcc")
    A("s_lshl_b32 s63, s61, 9"); A("v_lshlrev_b32 v17, 4, v13"); A("v_add_u32 v17, s63, v17")
    A("s_waitcnt lgkmcnt(0)")
    A("s_or_b32 s34, s34, 1")
    A(f"s_or_b32 s62, s2, {s(S_WAVE)}"); A("s_cmp_lg_u32 s62, 0"); A("s_cbranch_scc1 L_nononce")
    A("v_mov_b32 v3, 0"); A("v_mov_b32 v4, s34")
    A("s_mov_b64 exec, 1")
    A(f"global_store_dword v3, v4, {s(P_DBG,2)} sc1")
    A("s_mov_b64 exec, -1")
    A.label("L_nononce")
    srd(A, 36, P_K, S*D*2); srd(A, 40, P_V, S*D*2); srd(A, 44, P_SK, D*4*2)
    srd(A, SR_FLAG, P_WS, 1024*128, WS_FLAG)
    KR, VR = 20, 32
    for j in range(3): A.vm("kv", f"buffer_load_dword {v(KR+j)}, v16, s[36:39], 0 offen offset:{1024*j}")
    for j in range(4): A.vm("kv", f"buffer_load_dword {v(KR+3+j)}, v14, s[36:39], 0 offen offset:{1024*j}")
    for j in range(4): A.vm("kv", f"buffer_load_dword {v(KR+7+j)}, v15, s[36:39], 0 offen offset:{1024*j}")
    for j in range(4): A.vm("kv", f"buffer_load_dword {v(VR+j)}, v14, s[40:43], 0 offen offset:{1024*j}")
    for j in range(4): A.vm("kv", f"buffer_load_dword {v(VR+4+j)}, v15, s[40:43], 0 offen offset:{1024*j}")
    A.vm("kv", "buffer_load_dwordx4 v[40:43], v17, s[44:47], 0 offen")
    base_vm = list(A.vmlist)
    A("s_cmp_ge_u32 s2, 224")
    A("s_cbranch_scc1 L_stats_issue")
    A("s_and_b32 s60, s2, 7"); A("s_lshr_b32 s61, s2, 3")
    A("s_lshr_b32 s64, s60, 1"); A("s_lshl_b32 s64, s64, 2"); A("s_and_b32 s62, s61, 3"); A("s_add_u32 s64, s64, s62")
    A("s_and_b32 s65, s60, 1"); A("s_mul_i32 s65, s65, 7"); A("s_lshr_b32 s62, s61, 2"); A("s_add_u32 s65, s65, s62")
    A(f"s_lshr_b32 s66, {s(S_WAVE)}, 1"); A(f"s_and_b32 s67, {s(S_WAVE)}, 1")
    srd(A, 48, P_Q, S*D*2); srd(A, 52, P_W1, D*F*2)
    A("v_lshrrev_b32 v8, 3, v1"); A("v_lshrrev_b32 v9, 4, v1"); A("v_and_b32 v10, 7, v1")
    A("v_xor_b32 v10, v10, v9"); A("v_lshlrev_b32 v10, 4, v10"); A("v_lshl_add_u32 v10, v8, 10, v10")
    A("s_lshl_b32 s62, s64, 17"); A(f"s_lshl_b32 s63, {s(S_WAVE)}, 15"); A("s_add_u32 s62, s62, s63")
    A("v_add_u32 v44, s62, v10")
    A("v_xor_b32 v45, 64, v44"); A("v_add_u32 v45, 8192, v45")
    A("v_add_u32 v46, 16384, v44"); A("v_add_u32 v47, 16384, v45")
    A("v_and_b32 v10, 15, v1"); A("v_lshlrev_b32 v11, 2, v9"); A("v_xor_b32 v10, v10, v11"); A("v_lshlrev_b32 v10, 4, v10")
    A("v_mul_u32_u24 v11, 3584, v9"); A("v_add_u32 v10, v10, v11")
    A(f"s_mul_i32 s62, {s(S_WAVE)}, {16*3584}"); A("s_lshl_b32 s63, s65, 8"); A("s_add_u32 s62, s62, s63")
    A("v_add_u32 v48, s62, v10")
    for u in range(1, 4): A(f"v_add_u32 {v(48+u)}, {4*3584*u}, v48")
    A(f"s_lshl_b32 s68, {s(S_WAVE)}, 12")
    def g1_dma(st, u):
        slot = st & 3
        if u < 4:
            A(f"s_add_u32 m0, s68, {slot*G1_SLOT + 1024*u}")
            A.vm(f"D{st}", f"buffer_load_dwordx4 {v(44+u)}, s[48:51], s69 offen lds")
        else:
            A(f"s_add_u32 m0, s68, {slot*G1_SLOT + 16384 + 1024*(u-4)}")
            A.vm(f"D{st}", f"buffer_load_dwordx4 {v(48+u-4)}, s[52:55], s70 offen lds")
        if u == 7:
            A("s_add_u32 s69, s69, 128"); A(f"s_add_u32 s70, s70, {64*3584}")
    A("s_mov_b32 s69, 0"); A("s_mov_b32 s70, 0")
    for st in range(4):
        for u in range(8): g1_dma(st, u)
    g1_vm = list(A.vmlist)
    A("s_branch L_kv_compute")
    A.label("L_stats_issue")
    A.vmlist = list(base_vm)
    A("s_sub_u32 s64, s2, 224")
    for r_ in range(46, 52): A(f"v_mov_b32 {v(r_)}, 0")
    srd(A, 48, P_Q, S*D*2); srd(A, 52, P_W1, D*F*2)
    A("v_lshrrev_b32 v8, 4, v1"); A("v_and_b32 v9, 15, v1")
    A("v_lshlrev_b32 v8, 10, v8"); A("v_lshl_add_u32 v8, v9, 4, v8")
    A("s_lshl_b32 s62, s64, 16"); A(f"s_lshl_b32 s63, {s(S_WAVE)}, 14"); A("s_add_u32 s62, s62, s63")
    A("v_add_u32 v44, s62, v8")
    LN = 128
    for g in range(4):
        for i in range(4):
            A.vm(f"ln{g}", f"buffer_load_dwordx4 {v(LN+16*g+4*i,4)}, v44, s[48:51], 0 offen offset:{256*i}")
        if g < 3: A("v_add_u32 v44, 4096, v44")
    A("s_min_u32 s65, s64, 27")
    A("v_lshrrev_b32 v8, 3, v1"); A("v_and_b32 v9, 7, v1")
    A("v_mul_u32_u24 v8, 3584, v8"); A("v_lshl_add_u32 v8, v9, 4, v8")
    A(f"s_mul_i32 s62, {s(S_WAVE)}, {128*3584}"); A("s_lshl_b32 s63, s65, 7"); A("s_add_u32 s62, s62, s63")
    A("v_add_u32 v45, s62, v8")
    CSL = 192
    for i in range(16):
        A.vm("cs", f"buffer_load_dwordx4 {v(CSL+4*i,4)}, v45, s[52:55], 0 offen")
        if i < 15: A(f"v_add_u32 v45, {8*3584}, v45")
    stats_vm = list(A.vmlist)
    assert len(stats_vm) == len(g1_vm)
    A.label("L_kv_compute")
    A.wait_vm("kv")
    stamp(A, 1)
    SK, KF, U = 56, 64, 88
    for c in range(2):
        for h in range(2):
            A(f"v_lshlrev_b32 {v(SK+4*c+2*h)}, 16, {v(40+2*c+h)}")
            A(f"v_and_b32 {v(SK+4*c+2*h+1)}, 0xffff0000, {v(40+2*c+h)}")
    for j in range(11):
        A(f"v_lshlrev_b32 {v(KF+j)}, 16, {v(KR+j)}"); A(f"v_and_b32 {v(KF+11+j)}, 0xffff0000, {v(KR+j)}")
    for c in range(2):
        for t in range(8):
            kk = KF + 11*c
            A(f"v_mul_f32 {v(U+8*c+t)}, {v(kk+t+3)}, {v(SK+4*c+0)}")
            for j in range(1, 4): A(f"v_fmac_f32 {v(U+8*c+t)}, {v(kk+t+3-j)}, {v(SK+4*c+j)}")
    for t in range(8):
        A(f"v_lshlrev_b32 v5, 16, {v(VR+t)}"); A(f"v_and_b32 v6, 0xffff0000, {v(VR+t)}")
        A(f"v_mul_f32 {v(U+t)}, {v(U+t)}, v5"); A(f"v_mul_f32 {v(U+8+t)}, {v(U+8+t)}, v6")
    for c in range(2):
        for i in range(4):
            A(f"v_cvt_pk_bf16_f32 {v(104+4*c+i)}, {v(U+8*c+7-2*i)}, {v(U+8*c+6-2*i)}")
    srd(A, 36, P_WS, S*D*2, WS_KVT)
    A("s_lshr_b32 s60, s2, 3"); A("s_and_b32 s61, s2, 7")
    A("s_lshl_b32 s62, s61, 18"); A("s_lshl_b32 s63, s60, 7"); A("s_add_u32 s62, s62, s63")
    A("v_lshlrev_b32 v17, 13, v13"); A("v_lshl_add_u32 v17, v12, 4, v17"); A("v_add_u32 v17, s62, v17")
    common = []
    A("buffer_store_dwordx4 v[104:107], v17, s[36:39], 0 offen sc1")
    A("v_add_u32 v17, 4096, v17")
    A("buffer_store_dwordx4 v[108:111], v17, s[36:39], 0 offen sc1")
    A("v_mov_b32 v34, 0")
    A(f"global_load_dword v35, v34, {s(P_DBG,2)} sc1")
    common = ["kvst", "kvst", "nonce"]
    stamp(A, 2)
    A("s_cmp_ge_u32 s2, 224")
    A("s_cbranch_scc1 L_stats_compute")
    A.vmlist = g1_vm + common
    A("v_lshrrev_b32 v8, 5, v1")
    A("v_and_b32 v10, 31, v1"); A("v_bfe_u32 v11, v1, 1, 3")
    A("s_lshl_b32 s62, s67, 13")
    A("v_lshlrev_b32 v16, 7, v10"); A("v_add_u32 v16, s62, v16")
    for ks in range(4):
        A(f"v_add_u32 v17, {2*ks}, v8"); A("v_xor_b32 v17, v17, v11")
        A(f"v_lshl_add_u32 {v(20+ks)}, v17, 4, v16")
        A(f"v_add_u32 {v(24+ks)}, 0x10000, {v(20+ks)}")
    A("v_and_b32 v10, 15, v1"); A("v_lshrrev_b32 v11, 2, v10"); A("v_bfe_u32 v16, v1, 4, 1")
    A("v_lshl_add_u32 v17, v8, 3, v11"); A("v_lshlrev_b32 v17, 8, v17")
    A("v_bfe_u32 v18, v1, 1, 1"); A("v_lshl_add_u32 v18, v16, 1, v18"); A("v_lshl_add_u32 v17, v18, 4, v17")
    A("v_and_b32 v18, 1, v1"); A("v_lshl_add_u32 v17, v18, 3, v17"); A("v_add_u32 v17, 16384, v17")
    for ft in range(2):
        A("s_lshl_b32 s62, s66, 1"); A(f"s_add_u32 s62, s62, {ft}")
        A("v_xor_b32 v18, s62, v11")
        A(f"v_lshl_add_u32 {v(28+ft)}, v18, 6, v17")
        A(f"v_add_u32 {v(30+ft)}, 0x10000, {v(28+ft)}")
    ACC = 64
    for i in range(64): A(f"v_mov_b32 {v(ACC+i)}, 0")
    FA = [128, 144]
    def frag_reads(st, ks, setb):
        slot = st & 3; hi = slot >= 2; so = (slot & 1)*G1_SLOT
        L = []
        for ft in range(2):
            ra = (30 if hi else 28) + ft
            L.append(f"ds_read_b64_tr_b16 {v(setb+4*ft,2)}, {v(ra)} offset:{so + 4096*ks}")
            L.append(f"ds_read_b64_tr_b16 {v(setb+4*ft+2,2)}, {v(ra)} offset:{so + 4096*ks + 1024}")
        for tt in range(2):
            rb_ = (24 if hi else 20) + ks
            L.append(f"ds_read_b128 {v(setb+8+4*tt,4)}, {v(rb_)} offset:{so + 4096*tt}")
        return L
    srd(A, 40, P_WS, S*8, WS_STAT); srd(A, 44, P_WS, F*4, WS_CS); srd(A, 56, P_B1, F*2)
    A("v_and_b32 v32, 31, v1"); A("v_lshlrev_b32 v33, 7, v32")
    A("s_lshl_b32 s62, s64, 7"); A("s_lshl_b32 s63, s67, 6"); A("s_add_u32 s62, s62, s63")
    A("v_add_u32 v36, s62, v32"); A("v_lshlrev_b32 v36, 3, v36")
    A("s_lshl_b32 s62, s65, 7"); A("s_lshl_b32 s63, s66, 6"); A("s_add_u32 s62, s62, s63")
    A("v_add_u32 v37, s62, v32")
    A("v_lshlrev_b32 v38, 2, v37"); A("v_lshlrev_b32 v37, 1, v37")
    A.wait_vm("D0")
    A("s_barrier")
    stamp(A, 3)
    for l in frag_reads(0, 0, FA[0]): A(l)
    for st in range(8):
        for ks in range(4):
            p = 4*st + ks
            cur = FA[p & 1]; nxt = FA[(p+1) & 1]
            if ks == 3 and st < 7:
                A.wait_vm(f"D{st+1}")
                A("s_barrier")
                if st == 3:
                    nonce_check(A, 34)
                    A("s_lshl_b32 s61, s2, 7"); A(f"s_add_u32 s61, s61, {F2*128}")
                    flag_set(A, 4)
                    flag_issue(A, "F1", 39, 33)
                if st == 5:
                    flag_check(A, 39, 33, "f1")
                    A.vm("aug", "buffer_load_dwordx2 v[52:53], v36, s[40:43], 0 offen sc1")
                    A.vm("aug", "buffer_load_dwordx2 v[54:55], v36, s[40:43], 0 offen offset:256 sc1")
                    A.vm("aug", "buffer_load_dword v56, v38, s[44:47], 0 offen sc1")
                    A.vm("aug", "buffer_load_dword v57, v38, s[44:47], 0 offen offset:128 sc1")
                    A.vm("aug", "buffer_load_ushort v58, v37, s[56:59], 0 offen")
                    A.vm("aug", "buffer_load_ushort v59, v37, s[56:59], 0 offen offset:64")
            last = (st == 7 and ks == 3)
            r = [] if last else (frag_reads(st, ks+1, nxt) if ks < 3 else frag_reads(st+1, 0, nxt))
            if ks == 3: q, part = st, 0
            else: q, part = st-1, ks+1
            d = [(q+3, 2*part), (q+3, 2*part+1)] if (q >= 1 and q+3 <= 7) else []
            A("s_waitcnt lgkmcnt(0)")
            mf = [f"v_mfma_f32_32x32x16_bf16 {v(ACC+32*ft+16*tt,16)}, {v(cur+4*ft,4)}, {v(cur+8+4*tt,4)}, {v(ACC+32*ft+16*tt,16)}" for ft in range(2) for tt in range(2)]
            for m_i, m_ in enumerate(mf):
                A(m_)
                for _ in range(2):
                    if r: A(r.pop(0))
                if m_i in (1, 3) and d: g1_dma(*d.pop(0))
    stamp(A, 4)
    A.wait_vm("aug")
    AA, BB = 128, 136
    A("v_cmp_gt_u32 vcc, 32, v1")
    for ft in range(2):
        A(f"v_cvt_pk_bf16_f32 v4, {v(56+ft)}, {v(56+ft)}"); A("v_lshlrev_b32 v4, 16, v4")
        A(f"v_sub_f32 v5, {v(56+ft)}, v4")
        A(f"v_cvt_pk_bf16_f32 v4, {v(56+ft)}, v5")
        A(f"v_cndmask_b32 {v(AA+4*ft)}, 0, v4, vcc")
        A(f"v_cndmask_b32 {v(AA+4*ft+1)}, 0, {v(58+ft)}, vcc")
        A(f"v_mov_b32 {v(AA+4*ft+2)}, 0"); A(f"v_mov_b32 {v(AA+4*ft+3)}, 0")
    for tt in range(2):
        m_, sd_ = 52+2*tt, 53+2*tt
        A(f"v_xor_b32 v4, 0x80000000, {v(m_)}")
        A(f"v_lshrrev_b32 v5, 16, v4"); A(f"v_or_b32 {v(BB+4*tt)}, v4, v5")
        A(f"v_lshrrev_b32 {v(BB+4*tt+1)}, 16, {v(sd_)}")
        A(f"v_mov_b32 {v(BB+4*tt+2)}, 0"); A(f"v_mov_b32 {v(BB+4*tt+3)}, 0")
        A(f"v_rcp_f32 {v(sd_)}, {v(sd_)}")
    for ft in range(2):
        for tt in range(2):
            c = ACC+32*ft+16*tt
            A(f"v_mfma_f32_32x32x16_bf16 {v(c,16)}, {v(AA+4*ft,4)}, {v(BB+4*tt,4)}, {v(c,16)}")
    conv_pre(A)
    srd(A, 44, P_WS, H_BYTES, WS_H)
    A("s_lshl_b32 s62, s64, 2"); A("s_lshl_b32 s63, s67, 1"); A("s_add_u32 s62, s62, s63"); A("s_mul_i32 s62, s62, 112")
    A("s_lshl_b32 s63, s65, 3"); A("s_add_u32 s62, s62, s63"); A("s_lshl_b32 s63, s66, 2"); A("s_add_u32 s62, s62, s63")
    A("s_lshl_b32 s62, s62, 10")
    A("v_lshlrev_b32 v10, 4, v1"); A("v_add_u32 v10, s62, v10"); A(f"v_add_u32 v11, {112*1024}, v10")
    for ft in range(2):
        for tt in range(2):
            c = ACC + 32*ft + 16*tt
            rs = 53 + 2*tt
            for r_ in range(16):
                A(f"v_mul_f32 {v(c+r_)}, {v(c+r_)}, {v(rs)}")
                A(f"v_max_f32 v16, 0, {v(c+r_)}")
                A(f"v_mul_f32 {v(c+r_)}, {v(c+r_)}, v16")
            o = 128 + 8*((2*ft+tt) & 1)
            for d_ in range(8): A(f"v_cvt_pk_bf16_f32 {v(o+d_)}, {v(c+2*d_)}, {v(c+2*d_+1)}")
            A.vm("Hst", f"buffer_store_dwordx4 {v(o,4)}, {v(10+tt)}, s[44:47], 0 offen offset:{2048*ft} sc1")
            A.vm("Hst", f"buffer_store_dwordx4 {v(o+4,4)}, {v(10+tt)}, s[44:47], 0 offen offset:{2048*ft+1024} sc1")
    A("s_lshl_b32 s75, s64, 4"); A("s_add_u32 s75, s75, s65"); A(f"s_add_u32 s75, s75, {F3}")
    A.wait_vm("h")
    join_vm = list(A.vmlist)
    A("s_branch L_conv")
    A.label("L_stats_compute")
    A.vmlist = stats_vm + common
    srd(A, 40, P_WS, S*8, WS_STAT); srd(A, 44, P_WS, F*4, WS_CS)
    A("s_mov_b32 s62, 0x3f803f80")
    for g in range(4):
        A.wait_vm(f"ln{g}")
        A("v_mov_b32 v4, 0"); A("v_mov_b32 v5, 0")
        for i in range(16):
            A(f"v_dot2_f32_bf16 v4, {v(LN+16*g+i)}, s62, v4")
            A(f"v_dot2_f32_bf16 v5, {v(LN+16*g+i)}, {v(LN+16*g+i)}, v5")
        for x in (4, 5):
            A(f"v_add_f32_dpp v6, {v(x)}, {v(x)} quad_perm:[1,0,3,2] row_mask:0xf bank_mask:0xf")
            A(f"v_add_f32_dpp {v(x)}, v6, v6 quad_perm:[2,3,0,1] row_mask:0xf bank_mask:0xf")
            A(f"v_add_f32_dpp v6, {v(x)}, {v(x)} row_half_mirror row_mask:0xf bank_mask:0xf")
            A(f"v_add_f32_dpp {v(x)}, v6, v6 row_mirror row_mask:0xf bank_mask:0xf")
        A("v_mul_f32 v4, 0x3b000000, v4")
        A("v_mul_f32 v5, 0x3b000000, v5")
        A("v_fma_f32 v5, -v4, v4, v5")
        A("v_max_f32 v5, 0, v5")
        round_bf16(A, 4); round_bf16(A, 5)
        A("v_add_f32 v5, 0x3727c5ac, v5"); round_bf16(A, 5)
        A("v_sqrt_f32 v5, v5"); round_bf16(A, 5)
        A(f"v_mov_b32 {v(112+2*g)}, v4"); A(f"v_mov_b32 {v(113+2*g)}, v5")
    A("s_lshl_b32 s62, s64, 6"); A(f"s_lshl_b32 s63, {s(S_WAVE)}, 4"); A("s_add_u32 s62, s62, s63")
    A("v_lshrrev_b32 v8, 4, v1"); A("v_add_u32 v8, s62, v8"); A("v_lshlrev_b32 v8, 3, v8")
    A("v_and_b32 v9, 15, v1"); A("v_cmp_eq_u32 vcc, 0, v9")
    A(f"v_mov_b32 v9, {OOB}"); A("v_cndmask_b32 v8, v9, v8, vcc")
    for g in range(4):
        A.vm("stst", f"buffer_store_dwordx2 {v(112+2*g,2)}, v8, s[40:43], 0 offen offset:{32*g} sc1")
    A.wait_vm("cs")
    A("s_mov_b32 s62, 0x00003f80"); A("s_mov_b32 s63, 0x3f800000")
    for c in range(8): A(f"v_mov_b32 {v(96+c)}, 0")
    for i in range(16):
        for dw in range(4):
            A(f"v_dot2_f32_bf16 {v(96+2*dw)}, {v(CSL+4*i+dw)}, s62, {v(96+2*dw)}")
            A(f"v_dot2_f32_bf16 {v(96+2*dw+1)}, {v(CSL+4*i+dw)}, s63, {v(96+2*dw+1)}")
    for c in range(8):
        x = 96 + c
        A(f"v_add_f32_dpp {v(x)}, {v(x)}, {v(x)} row_ror:8 row_mask:0xf bank_mask:0xf")
        A(f"v_mov_b32 v6, {v(x)}"); A(f"v_permlane16_swap_b32 {v(x)}, v6"); A(f"v_add_f32 {v(x)}, {v(x)}, v6")
        A(f"v_mov_b32 v6, {v(x)}"); A(f"v_permlane32_swap_b32 {v(x)}, v6"); A(f"v_add_f32 {v(x)}, {v(x)}, v6")
    A(f"s_lshl_b32 s62, {s(S_WAVE)}, 8"); A(f"s_add_u32 s62, s62, {LDS_CSR}")
    A("v_and_b32 v8, 7, v1"); A("v_lshlrev_b32 v8, 5, v8"); A("v_add_u32 v8, s62, v8")
    A("ds_write_b128 v8, v[96:99]"); A("ds_write_b128 v8, v[100:103] offset:16")
    A("s_waitcnt lgkmcnt(0)"); A("s_barrier")
    A(f"v_lshlrev_b32 v8, 2, v1"); A(f"v_add_u32 v8, {LDS_CSR}, v8")
    for w in range(4): A(f"ds_read_b32 {v(96+w)}, v8 offset:{256*w}")
    A("s_waitcnt lgkmcnt(0)")
    A("v_add_f32 v96, v96, v97"); A("v_add_f32 v98, v98, v99"); A("v_add_f32 v96, v96, v98")
    A("s_lshl_b32 s62, s64, 8")
    A("v_lshlrev_b32 v8, 2, v1"); A("v_add_u32 v8, s62, v8")
    A.vm("stst", "buffer_store_dword v96, v8, s[44:47], 0 offen sc1")
    A("s_waitcnt vmcnt(0)")
    A("s_barrier")
    nonce_check(A, 34)
    A("s_lshl_b32 s61, s64, 7"); A(f"s_add_u32 s61, s61, {F1*128}"); flag_set(A, 4)
    A("s_lshl_b32 s61, s2, 7"); A(f"s_add_u32 s61, s61, {F2*128}"); flag_set(A, 4)
    conv_pre(A)
    A("s_movk_i32 s75, 2000")
    A("s_waitcnt vmcnt(0)")
    A.label("L_conv")
    A.vmlist = ["Hst"]*8
    stamp(A, 5)
    flag_check(A, 33, 32, "f2")
    A(f"s_add_u32 s48, {s(P_WS)}, {WS_KVT}"); A(f"s_addc_u32 s49, {s(P_WS+1)}, 0")
    A("s_add_u32 s48, s48, s74"); A("s_addc_u32 s49, s49, 0"); A("s_mov_b32 s50, 4096"); A("s_mov_b32 s51, 0x00020000")
    A(f"s_add_u32 s52, {s(P_WS)}, {WS_YT}"); A(f"s_addc_u32 s53, {s(P_WS+1)}, 0")
    A("s_add_u32 s52, s52, s74"); A("s_addc_u32 s53, s53, 0"); A("s_mov_b32 s54, 4096"); A("s_mov_b32 s55, 0x00020000")
    A("s_lshl_b32 s60, s72, 11")
    A("v_lshlrev_b32 v3, 4, v1"); A("v_add_u32 v3, s60, v3")
    A.vm("U", "buffer_load_dwordx4 v[188:191], v3, s[48:51], 0 offen sc1")
    A.vm("U", "buffer_load_dwordx4 v[192:195], v3, s[48:51], 0 offen offset:1024 sc1")
    A("s_barrier")
    A(f"s_mul_i32 s68, s71, {CONV_U}"); A(f"s_add_u32 s68, s68, {LDS_U + 512}")
    A(f"s_mul_i32 s69, s71, {CONV_HC}")
    A("v_mov_b32 v36, 0"); A("v_mov_b32 v37, 0"); A("v_mov_b32 v38, 0"); A("v_mov_b32 v39, 0")
    A("s_sub_u32 s60, s68, 512")
    A("v_and_b32 v34, 31, v1"); A("v_lshlrev_b32 v34, 4, v34"); A("v_add_u32 v34, s60, v34")
    A("ds_write_b128 v34, v[36:39]")
    A("v_and_b32 v4, 127, v0"); A("v_lshlrev_b32 v5, 4, v4"); A("v_add_u32 v35, s69, v5")
    def build(P, W, off):
        A(f"ds_write_b128 v35, {v(P,4)} offset:{off}")
        seq = [P, P+1, P+2, P+3, W, W+1]
        for i in range(4): A(f"v_alignbit_b32 {v(40+i)}, {v(seq[i+1])}, {v(seq[i])}, 16")
        A(f"ds_write_b128 v35, v[40:43] offset:{off + CONV_COPY}")
        for i in range(4): A(f"v_mov_b32 {v(44+i)}, {v(seq[i+1])}")
        A(f"ds_write_b128 v35, v[44:47] offset:{off + 2*CONV_COPY}")
        for i in range(4): A(f"v_alignbit_b32 {v(48+i)}, {v(seq[i+2])}, {v(seq[i+1])}, 16")
        A(f"ds_write_b128 v35, v[48:51] offset:{off + 3*CONV_COPY}")
    build(160, 164, 0); build(168, 172, 2048)
    A("v_cmp_gt_u32 vcc, 2, v4")
    A("s_and_saveexec_b64 s[62:63], vcc")
    A("s_cbranch_execz L_conv_skip3")
    build(176, 180, 4096)
    A.label("L_conv_skip3")
    A("s_mov_b64 exec, s[62:63]")
    A("v_and_b32 v4, 15, v1"); A("v_add_u32 v4, 1, v4"); A("v_lshrrev_b32 v5, 4, v1")
    A("v_and_b32 v6, 3, v4"); A(f"v_mul_u32_u24 v6, {CONV_COPY}, v6")
    A("v_and_b32 v7, 0x1c, v4"); A("v_lshl_add_u32 v7, v5, 3, v7"); A("v_lshl_add_u32 v6, v7, 1, v6")
    A("s_lshl_b32 s60, s72, 8"); A("s_add_u32 s60, s60, s69"); A("v_add_u32 v52, s60, v6")
    A("v_and_b32 v4, 15, v1"); A("v_lshlrev_b32 v4, 5, v4"); A("v_lshlrev_b32 v5, 4, v5"); A("v_sub_u32 v4, v4, v5")
    A("s_lshl_b32 s60, s72, 8"); A("s_sub_u32 s60, s68, s60"); A("s_add_u32 s60, s60, 16"); A("s_sub_u32 s60, s60, 256")
    A("v_add_u32 v53, s60, v4")
    CA = 64
    for i in range(32): A(f"v_mov_b32 {v(CA+i)}, 0")
    A("s_lshl_b32 s60, s72, 11"); A("s_add_u32 s60, s60, s68")
    A("v_lshlrev_b32 v3, 4, v1"); A("v_add_u32 v3, s60, v3")
    A.wait_vm("U")
    A("ds_write_b128 v3, v[188:191]"); A("ds_write_b128 v3, v[192:195] offset:1024")
    A("s_and_b32 s60, s2, 7"); A("s_lshr_b32 s61, s2, 3")
    A("s_lshl_b32 s64, s60, 2"); A("s_and_b32 s62, s61, 3"); A("s_add_u32 s64, s64, s62")
    A("s_lshr_b32 s65, s61, 2")
    A("s_waitcnt lgkmcnt(0)")
    A("s_barrier")
    A("s_mov_b32 s61, s75"); A("s_lshl_b32 s61, s61, 7"); flag_set(A, 4)
    srd(A, 36, P_W2, F*D*2); srd(A, 40, P_Q, S*D*2)
    A("v_lshrrev_b32 v8, 3, v1"); A("v_and_b32 v10, 7, v1")
    A("v_bfe_u32 v9, v1, 4, 1"); A("v_lshlrev_b32 v9, 2, v9"); A("v_xor_b32 v11, v10, v9"); A("v_lshlrev_b32 v11, 4, v11")
    A("v_lshl_add_u32 v24, v8, 10, v11")
    A(f"s_mul_i32 s60, {s(S_WAVE)}, {28*16*1024}"); A("s_lshl_b32 s61, s65, 7"); A("s_add_u32 s60, s60, s61")
    A("v_add_u32 v24, s60, v24"); A("v_add_u32 v25, 8192, v24")
    A(f"s_mul_i32 s70, {s(S_WAVE)}, 14336"); A(f"s_add_u32 s70, s70, {G2_RING}")
    A("s_mov_b32 s56, 0")
    def w2_dma(ks):
        slot = ks % 7
        A(f"s_add_u32 m0, s70, {slot*2048}");      A.vm(f"W{ks}", "buffer_load_dwordx4 v24, s[36:39], s56 offen lds")
        A(f"s_add_u32 m0, s70, {slot*2048+1024}"); A.vm(f"W{ks}", "buffer_load_dwordx4 v25, s[36:39], s56 offen lds")
        A("s_add_u32 s56, s56, 16384")
    for ks in range(7): w2_dma(ks)
    A("v_lshrrev_b32 v9, 4, v1"); A("v_xor_b32 v11, v10, v9"); A("v_lshlrev_b32 v11, 4, v11"); A("v_lshl_add_u32 v11, v8, 10, v11")
    A("s_lshl_b32 s60, s64, 16"); A(f"s_lshl_b32 s61, {s(S_WAVE)}, 14"); A("s_add_u32 s60, s60, s61"); A("s_lshl_b32 s61, s65, 7"); A("s_add_u32 s60, s60, s61")
    A("v_add_u32 v26, s60, v11"); A("v_xor_b32 v27, 64, v26"); A("v_add_u32 v27, 8192, v27")
    A(f"s_lshl_b32 s57, {s(S_WAVE)}, 11")
    for u in range(2):
        A(f"s_add_u32 m0, s57, {G2_XT + 1024*u}"); A.vm("xt", f"buffer_load_dwordx4 {v(26+u)}, s[40:43], 0 offen lds")
    stamp(A, 6)
    FR = [96, 160]
    def loads(i, setb):
        L = []
        for a_ in range(8):
            off = 512*a_ + 64*i
            L.append(f"ds_read_b64 {v(setb+4*a_,2)}, v52 offset:{off}")
            L.append(f"ds_read_b64 {v(setb+4*a_+2,2)}, v52 offset:{off+8}")
        for g in range(8):
            L.append(f"ds_read_b128 {v(setb+32+4*g,4)}, v53 offset:{512*g - 64*i + 256}")
        return L
    for l in loads(0, FR[0]): A(l)
    for i in range(4):
        cur = FR[i & 1]; nxt = FR[(i+1) & 1]
        nl = loads(i+1, nxt) if i < 3 else []
        A("s_waitcnt lgkmcnt(0)")
        mf = [f"v_mfma_f32_16x16x32_bf16 {v(CA+4*(a_+g),4)}, {v(cur+4*a_,4)}, {v(cur+32+4*g,4)}, {v(CA+4*(a_+g),4)}" for a_ in range(8) for g in range(8-a_)]
        li = 0
        for n_, m_ in enumerate(mf):
            A(m_)
            if li < len(nl) and n_ < 30: A(nl[li]); li += 1
        while li < len(nl): A(nl[li]); li += 1
        if i == 2:
            A("s_lshr_b32 s60, s64, 1"); A("s_lshl_b32 s60, s60, 4"); A(f"s_add_u32 s60, s60, {F3}"); A("s_lshl_b32 s60, s60, 7")
            A("v_cmp_gt_u32 vcc, 14, v1"); A("v_cndmask_b32 v28, 0, v1, vcc"); A("v_lshlrev_b32 v28, 7, v28"); A("v_add_u32 v28, s60, v28")
            flag_issue(A, "F3", 29, 28)
    stamp(A, 7)
    A(f"s_lshl_b32 s60, {s(S_WAVE)}, 12"); A(f"s_add_u32 s60, s60, {LDS_RED}")
    A("v_lshlrev_b32 v4, 4, v1"); A("v_add_u32 v5, s60, v4")
    A(f"s_xor_b32 s61, {s(S_WAVE)}, 1"); A("s_lshl_b32 s61, s61, 12"); A(f"s_add_u32 s61, s61, {LDS_RED}"); A("v_add_u32 v6, s61, v4")
    A("s_cmp_eq_u32 s72, 0"); A("s_cbranch_scc0 L_conv_h1")
    for j in range(4): A(f"ds_write_b128 v5, {v(CA+16+4*j,4)} offset:{1024*j}")
    A("s_branch L_conv_hj")
    A.label("L_conv_h1")
    for j in range(4): A(f"ds_write_b128 v5, {v(CA+4*j,4)} offset:{1024*j}")
    for j in range(16): A(f"v_mov_b32 {v(CA+j)}, {v(CA+16+j)}")
    A.label("L_conv_hj")
    A("s_waitcnt lgkmcnt(0)"); A("s_barrier")
    for j in range(4): A(f"ds_read_b128 {v(96+4*j,4)}, v6 offset:{1024*j}")
    A("v_and_b32 v7, 15, v1"); A("v_lshlrev_b32 v7, 5, v7"); A("v_lshrrev_b32 v8, 5, v1"); A("v_lshl_add_u32 v7, v8, 4, v7")
    A("v_bfe_u32 v8, v1, 4, 1"); A("v_lshlrev_b32 v8, 3, v8"); A("v_sub_u32 v7, v7, v8")
    A("s_lshl_b32 s60, s72, 11"); A("s_add_u32 s60, s60, s68"); A("s_add_u32 s60, s60, 8"); A("v_add_u32 v7, s60, v7")
    for j in range(4): A(f"ds_read_b64 {v(112+2*j,2)}, v7 offset:{512*j}")
    A("v_lshlrev_b32 v60, 16, v60")
    A("s_waitcnt lgkmcnt(0)")
    for j in range(4):
        for i in range(4): A(f"v_add_f32 {v(CA+4*j+i)}, {v(CA+4*j+i)}, {v(96+4*j+i)}")
        A(f"v_and_b32 v9, 0xffff0000, {v(112+2*j+1)}");  A(f"v_fmac_f32 {v(CA+4*j+0)}, v9, v60")
        A(f"v_lshlrev_b32 v9, 16, {v(112+2*j+1)}");      A(f"v_fmac_f32 {v(CA+4*j+1)}, v9, v60")
        A(f"v_and_b32 v9, 0xffff0000, {v(112+2*j)}");    A(f"v_fmac_f32 {v(CA+4*j+2)}, v9, v60")
        A(f"v_lshlrev_b32 v9, 16, {v(112+2*j)}");        A(f"v_fmac_f32 {v(CA+4*j+3)}, v9, v60")
        A(f"v_cvt_pk_bf16_f32 {v(120+2*j)}, {v(CA+4*j)}, {v(CA+4*j+1)}")
        A(f"v_cvt_pk_bf16_f32 {v(121+2*j)}, {v(CA+4*j+2)}, {v(CA+4*j+3)}")
    A(f"s_lshl_b32 s60, {s(S_WAVE)}, 11"); A(f"s_add_u32 s60, s60, {LDS_YO}")
    A("v_and_b32 v7, 15, v1"); A("v_lshlrev_b32 v7, 5, v7"); A("v_lshrrev_b32 v8, 4, v1"); A("v_lshl_add_u32 v7, v8, 3, v7"); A("v_add_u32 v7, s60, v7")
    for j in range(4): A(f"ds_write_b64 v7, {v(120+2*j,2)} offset:{512*j}")
    A("v_add_u32 v8, s60, v4")
    A("s_waitcnt lgkmcnt(0)")
    A("ds_read_b128 v[96:99], v8"); A("ds_read_b128 v[100:103], v8 offset:1024")
    A("s_lshl_b32 s60, s72, 11"); A("v_add_u32 v9, s60, v4")
    A("s_waitcnt lgkmcnt(1)")
    A.vm("yst", "buffer_store_dwordx4 v[96:99], v9, s[52:55], 0 offen sc1")
    A("s_waitcnt lgkmcnt(0)")
    A.vm("yst", "buffer_store_dwordx4 v[100:103], v9, s[52:55], 0 offen offset:1024 sc1")
    A.wait_vm("F3")
    flag_check(A, 29, 28, "f3")
    stamp(A, 8)
    srd(A, 40, P_WS, H_BYTES, WS_H)
    A("s_lshl_b32 s60, s64, 1"); A("s_mul_i32 s60, s60, 112"); A(f"s_mul_i32 s61, {s(S_WAVE)}, 28"); A("s_add_u32 s60, s60, s61"); A("s_lshl_b32 s60, s60, 10")
    A("v_lshlrev_b32 v30, 4, v1"); A("v_add_u32 v30, s60, v30"); A(f"v_add_u32 v31, {112*1024}, v30")
    HS = 32; WF = [88, 96]; GA = 104
    A("s_mov_b32 s58, 0")
    def h_load(ks):
        slot = ks % 7
        A.vm(f"H{ks}", f"buffer_load_dwordx4 {v(HS+8*slot,4)}, v30, s[40:43], s58 offen sc1")
        A.vm(f"H{ks}", f"buffer_load_dwordx4 {v(HS+8*slot+4,4)}, v31, s[40:43], s58 offen sc1")
        A("s_add_u32 s58, s58, 1024")
    for ks in range(7): h_load(ks)
    A("v_lshrrev_b32 v3, 5, v1")
    A("v_and_b32 v10, 15, v1"); A("v_lshrrev_b32 v11, 2, v10")
    A("v_lshl_add_u32 v13, v3, 2, v11"); A("v_lshlrev_b32 v13, 7, v13")
    A("v_bfe_u32 v14, v1, 4, 1"); A("v_bfe_u32 v15, v1, 1, 1"); A("v_lshl_add_u32 v14, v14, 1, v15"); A("v_lshl_add_u32 v13, v14, 4, v13")
    A("v_and_b32 v14, 1, v1"); A("v_lshl_add_u32 v13, v14, 3, v13")
    A("v_bfe_u32 v14, v1, 3, 1")
    A("v_add_u32 v13, s70, v13")
    for cht in range(2):
        A(f"v_xor_b32 v15, {cht}, v14"); A(f"v_lshl_add_u32 {v(28+cht)}, v15, 6, v13")
    for i in range(64): A(f"v_mov_b32 {v(GA+i)}, 0")
    def wreads(ks, setb):
        slot = ks % 7
        return [f"ds_read_b64_tr_b16 {v(setb+4*cht+2*hf,2)}, {v(28+cht)} offset:{slot*2048+1024*hf}" for cht in range(2) for hf in range(2)]
    for l in wreads(0, WF[0]): A(l)
    srd(A, 44, P_WS, S*D*2, WS_YT); srd(A, 48, P_WS, S*8, WS_STAT); srd(A, 52, P_B2, D*2)
    A(f"s_lshr_b32 s66, {s(S_WAVE)}, 1"); A(f"s_and_b32 s67, {s(S_WAVE)}, 1")
    for ks in range(28):
        cur = WF[ks & 1]; nxt = WF[(ks+1) & 1]
        if ks+1 < 28:
            A.wait_vm(f"W{ks+1}") if A.vm_younger(f"W{ks+1}") < A.vm_younger(f"H{ks}") else A.wait_vm(f"H{ks}")
            for l in wreads(ks+1, nxt): A(l)
            A("s_waitcnt lgkmcnt(4)")
        else:
            A.wait_vm(f"H{ks}"); A("s_waitcnt lgkmcnt(0)")
        for cht in range(2):
            for tt in range(2):
                c = GA + 32*cht + 16*tt
                A(f"v_mfma_f32_32x32x16_bf16 {v(c,16)}, {v(cur+4*cht,4)}, {v(HS+8*(ks%7)+4*tt,4)}, {v(c,16)}")
        if ks + 7 < 28:
            w2_dma(ks+7); h_load(ks+7)
        if ks == 2:
            A("s_barrier")
            A("s_lshl_b32 s61, s2, 7"); A(f"s_add_u32 s61, s61, {F4*128}"); flag_set(A, 4)
        if ks == 16:
            A("s_lshl_b32 s60, s65, 5"); A(f"s_add_u32 s60, s60, {F4}"); A("s_lshl_b32 s60, s60, 7")
            A("v_and_b32 v4, 31, v1"); A("v_lshlrev_b32 v4, 7, v4"); A("v_add_u32 v4, s60, v4")
            flag_issue(A, "F4", 5, 4)
        if ks == 21:
            A.wait_vm("F4")
            flag_check(A, 5, 4, "f4")
            A("v_lshrrev_b32 v8, 3, v1"); A("v_and_b32 v10, 7, v1")
            A("v_lshlrev_b32 v6, 12, v8"); A("v_lshl_add_u32 v6, v10, 4, v6")
            A("s_lshl_b32 s60, s65, 18"); A(f"s_lshl_b32 s61, {s(S_WAVE)}, 16"); A("s_add_u32 s60, s60, s61"); A("s_lshl_b32 s61, s64, 7"); A("s_add_u32 s60, s60, s61")
            A("v_add_u32 v6, s60, v6"); A("v_add_u32 v7, 32768, v6")
            A.vm("yt", "buffer_load_dwordx4 v[8:11], v6, s[44:47], 0 offen sc1")
            A.vm("yt", "buffer_load_dwordx4 v[12:15], v7, s[44:47], 0 offen sc1")
            A("s_lshl_b32 s60, s64, 6"); A("s_lshl_b32 s61, s67, 5"); A("s_add_u32 s60, s60, s61")
            A("v_and_b32 v6, 31, v1"); A("v_add_u32 v6, s60, v6"); A("v_lshlrev_b32 v6, 3, v6")
            A.vm("yt", "buffer_load_dwordx2 v[16:17], v6, s[48:51], 0 offen sc1")
            A("s_lshl_b32 s60, s65, 7"); A("s_lshl_b32 s61, s66, 6"); A("s_add_u32 s60, s60, s61")
            A("v_lshlrev_b32 v6, 3, v3"); A("v_add_u32 v6, s60, v6")
            for jj in range(4): A.vm("yt", f"buffer_load_dwordx2 {v(18+2*jj,2)}, v6, s[52:55], 0 offen offset:{16*jj}")
    stamp(A, 9)
    A(f"s_lshl_b32 s60, {s(S_WAVE)}, 14"); A(f"s_add_u32 s60, s60, {G2_XCH}")
    A("v_lshlrev_b32 v56, 4, v1"); A("v_add_u32 v57, s60, v56")
    A("v_lshrrev_b32 v8, 3, v1") if False else None
    A("v_lshrrev_b32 v42, 3, v1"); A("v_and_b32 v43, 7, v1"); A("v_bfe_u32 v44, v1, 4, 1"); A("v_lshlrev_b32 v44, 2, v44"); A("v_xor_b32 v43, v43, v44")
    A("v_lshlrev_b32 v43, 4, v43"); A("v_lshl_add_u32 v43, v42, 7, v43")
    A(f"s_add_u32 s61, s57, {G2_YT}"); A("v_add_u32 v43, s61, v43")
    for t in range(4):
        for jj in range(4):
            A(f"ds_write_b128 v57, {v(GA+16*t+4*jj,4)} offset:{4096*t+1024*jj}")
    A.wait_vm("yt")
    A("ds_write_b128 v43, v[8:11]"); A("ds_write_b128 v43, v[12:15] offset:1024")
    A("s_waitcnt lgkmcnt(0)"); A("s_barrier")
    A(f"s_lshl_b32 s60, {s(S_WAVE)}, 12"); A(f"s_add_u32 s60, s60, {G2_XCH}"); A("v_add_u32 v57, s60, v56")
    P = 104
    for w in range(4):
        for jj in range(4): A(f"ds_read_b128 {v(P+16*w+4*jj,4)}, v57 offset:{16384*w+1024*jj}")
    A("v_and_b32 v12, 31, v1"); A("v_bfe_u32 v13, v1, 1, 3")
    A("s_lshl_b32 s60, s67, 12"); A(f"s_add_u32 s60, s60, {G2_XT}")
    A("v_lshlrev_b32 v12, 7, v12"); A("v_lshl_add_u32 v12, v3, 3, v12"); A("v_add_u32 v12, s60, v12")
    A("s_lshl_b32 s61, s66, 2")
    for jj in range(4):
        A(f"s_add_u32 s60, s61, {jj}"); A("v_xor_b32 v14, s60, v13"); A(f"v_lshl_add_u32 {v(4+jj)}, v14, 4, v12")
    XR, YR = 32, 40
    A("s_waitcnt lgkmcnt(8)")
    for jj in range(4): A(f"ds_read_b64 {v(XR+2*jj,2)}, {v(4+jj)}")
    A("v_and_b32 v14, 15, v1"); A("v_lshrrev_b32 v14, 2, v14"); A("v_lshl_add_u32 v14, v3, 2, v14"); A("v_lshlrev_b32 v14, 7, v14")
    A("v_bfe_u32 v15, v1, 4, 1"); A("v_bfe_u32 v8, v1, 1, 1"); A("v_lshl_add_u32 v15, v15, 1, v8"); A("v_lshl_add_u32 v14, v15, 4, v14")
    A("v_and_b32 v15, 1, v1"); A("v_lshl_add_u32 v14, v15, 3, v14")
    A("v_bfe_u32 v15, v1, 3, 1"); A("v_xor_b32 v15, s67, v15"); A("v_lshl_add_u32 v14, v15, 6, v14")
    A("s_lshl_b32 s60, s66, 12"); A(f"s_add_u32 s60, s60, {G2_YT}"); A("v_add_u32 v14, s60, v14")
    A("s_waitcnt lgkmcnt(8)")
    for jj in range(4): A(f"ds_read_b64_tr_b16 {v(YR+2*jj,2)}, v14 offset:{1024*jj}")
    A("v_rcp_f32 v17, v17")
    A("s_waitcnt lgkmcnt(0)")
    for jj in range(4):
        for i in range(4):
            r_ = 4*jj + i
            A(f"v_add_f32 {v(P+r_)}, {v(P+r_)}, {v(P+16+r_)}")
            A(f"v_add_f32 {v(P+32+r_)}, {v(P+32+r_)}, {v(P+48+r_)}")
            A(f"v_add_f32 {v(P+r_)}, {v(P+r_)}, {v(P+32+r_)}")
            def unp(dst, src):
                if (i & 1) == 0: A(f"v_lshlrev_b32 {v(dst)}, 16, {v(src)}")
                else: A(f"v_and_b32 {v(dst)}, 0xffff0000, {v(src)}")
            unp(8, 18+2*jj+(i>>1));  A(f"v_add_f32 {v(P+r_)}, {v(P+r_)}, v8")
            unp(8, XR+2*jj+(i>>1));  A(f"v_add_f32 {v(P+r_)}, {v(P+r_)}, v8")
            A("v_sub_f32 v8, v8, v16"); round_bf16(A, 8); A("v_mul_f32 v8, v8, v17"); round_bf16(A, 8)
            unp(9, YR+2*jj+(i>>1))
            A(f"v_fmac_f32 {v(P+r_)}, v8, v9")
        A(f"v_cvt_pk_bf16_f32 {v(48+2*jj)}, {v(P+4*jj)}, {v(P+4*jj+1)}")
        A(f"v_cvt_pk_bf16_f32 {v(49+2*jj)}, {v(P+4*jj+2)}, {v(P+4*jj+3)}")
        A(f"ds_write_b64 {v(4+jj)}, {v(48+2*jj,2)} offset:{G2_OT-G2_XT}")
    A("s_waitcnt lgkmcnt(0)"); A("s_barrier")
    A(f"s_add_u32 s60, s57, {G2_OT}"); A("v_add_u32 v11, s60, v56")
    A("ds_read_b128 v[96:99], v11"); A("ds_read_b128 v[100:103], v11 offset:1024")
    srd(A, 56, P_OUT, S*D*2)
    A("s_waitcnt lgkmcnt(1)")
    A("buffer_store_dwordx4 v[96:99], v26, s[56:59], 0 offen")
    A("s_waitcnt lgkmcnt(0)")
    A("buffer_store_dwordx4 v[100:103], v27, s[56:59], 0 offen")
    if STAMPS:
        A("s_waitcnt vmcnt(0)")
        A("s_memrealtime s[100:101]")
    stamp_flush(A)
    A.label("L_end")
    A("s_endpgm")
    return A

HDR = open("parallel_sum__ssm_conv_h3__dense_activation_squared_relu__prompt.s.ref").read().split("\n")[:14]
def build(path):
    name = KN + "_kernel"
    b, k = kernel_text(name, gen())
    hdr = "\n".join(HDR) + f"\n; @launch grid=(256,1,1) block=(256,1,1) lds={LDS_TOTAL}\n"
    open(path, "w").write(hdr + '.amdgcn_target "amdgcn-amd-amdhsa--gfx950"\n' + b + k)
if __name__ == "__main__":
    if "--stamps" in sys.argv: STAMPS = True; sys.argv.remove("--stamps")
    build(sys.argv[1] if len(sys.argv) > 1 else "v2.s")
```

```python
import re

def v(i, n=1):  return f"v{i}" if n == 1 else f"v[{i}:{i+n-1}]"
def a(i, n=1):  return f"a{i}" if n == 1 else f"a[{i}:{i+n-1}]"
def s(i, n=1):  return f"s{i}" if n == 1 else f"s[{i}:{i+n-1}]"

_REG = re.compile(r"(?<![\w.])([vas])(\d+)(?![\w\[])|(?<![\w.])([vas])\[(\d+):(\d+)\]")
def regs_of(op):
    out = []
    op = op.strip()
    for m in _REG.finditer(op):
        if m.group(1): out.append((m.group(1), int(m.group(2))))
        else:
            for k in range(int(m.group(4)), int(m.group(5)) + 1): out.append((m.group(3), k))
    if re.search(r"\bvcc\b", op): out += [("s", "vcc")]
    if re.search(r"\bvcc_lo\b", op): out += [("s", "vcc")]
    if re.search(r"\bexec\b", op): out += [("s", "exec")]
    if re.search(r"\bm0\b", op): out += [("s", "m0")]
    return out

TRANS = ("v_exp_f32", "v_log_f32", "v_rcp_f32", "v_rsq_f32", "v_sqrt_f32", "v_sin_f32", "v_cos_f32", "v_rcp_iflag_f32")

class Ins:
    __slots__ = ("text", "mn", "ops", "kind", "wr", "rd", "passes", "srcC", "dpp")
    def __init__(self, text):
        self.text = text
        t = text.split(";")[0].strip()
        parts = t.split(None, 1)
        self.mn = parts[0]
        rest = parts[1] if len(parts) > 1 else ""
        ops, depth, cur = [], 0, ""
        for ch in rest:
            if ch == "[": depth += 1
            if ch == "]": depth -= 1
            if ch == "," and depth == 0: ops.append(cur.strip()); cur = ""
            else: cur += ch
        if cur.strip(): ops.append(cur.strip())
        self.ops = ops
        mn = self.mn
        self.passes = 0; self.srcC = []; self.dpp = ("dpp" in mn) or ("quad_perm" in t) or ("row_" in t) or ("wave_sh" in t) or ("wave_ro" in t)
        self.wr, self.rd = [], []
        R = regs_of
        if mn.startswith("v_mfma"):
            self.kind = "mfma"
            self.passes = 8 if "32x32" in mn else 4
            self.wr = R(ops[0]); self.rd = R(ops[1]) + R(ops[2]) + R(ops[3]); self.srcC = R(ops[3])
        elif mn.startswith("v_cmp"):
            self.kind = "valu"; self.wr = R(ops[0]); self.rd = sum((R(o) for o in ops[1:]), [])
        elif mn in ("v_readfirstlane_b32", "v_readlane_b32"):
            self.kind = "valu"; self.wr = R(ops[0]); self.rd = sum((R(o) for o in ops[1:]), [])
        elif (mn.startswith("v_permlane") and "swap" in mn) or mn.startswith("v_swap"):
            self.kind = "valu"; self.wr = R(ops[0]) + R(ops[1]); self.rd = R(ops[0]) + R(ops[1])
        elif mn.startswith("v_"):
            self.kind = "valu"
            n_dst = 2 if (mn.startswith(("v_add_co", "v_sub_co", "v_addc_co", "v_subb_co", "v_div_scale", "v_mad_u64"))) else 1
            self.wr = sum((R(o) for o in ops[:n_dst]), []); self.rd = sum((R(o) for o in ops[n_dst:]), [])
            if mn.startswith(("v_fmac", "v_pk_fmac", "v_dot2c", "v_writelane", "v_accvgpr_write")) and not mn.startswith("v_accvgpr_write"):
                self.rd += R(ops[0])
            if self.dpp or "op_sel" in t or "sdwa" in mn: self.rd += R(ops[0])
            if mn.startswith("v_cndmask") and len(ops) == 3: self.rd.append(("s", "vcc"))
        elif mn.startswith("ds_"):
            self.kind = "ds"
            if mn.startswith(("ds_read", "ds_bpermute", "ds_permute", "ds_swizzle")):
                self.wr = R(ops[0]); self.rd = sum((R(o) for o in ops[1:]), [])
            else:
                self.rd = sum((R(o) for o in ops), [])
        elif mn.startswith(("global_", "buffer_", "flat_")):
            self.kind = "vmem"
            if "load_lds" in mn or re.search(r"\blds\b", t):
                self.rd = sum((R(o) for o in ops), []) + [("s", "m0")]
            elif "load" in mn:
                self.wr = R(ops[0]); self.rd = sum((R(o) for o in ops[1:]), [])
            elif "atomic" in mn and re.search(r"\bsc0\b", t):
                if mn.startswith("global"):
                    self.wr = R(ops[0]); self.rd = sum((R(o) for o in ops[1:]), [])
                else:
                    self.wr = R(ops[0]); self.rd = sum((R(o) for o in ops), [])
            else:
                self.rd = sum((R(o) for o in ops), [])
        elif mn.startswith("s_"):
            self.kind = "salu"
            if mn.startswith(("s_cmp", "s_cbranch", "s_branch", "s_waitcnt", "s_barrier", "s_nop", "s_endpgm", "s_setprio", "s_sleep", "s_bitcmp")):
                self.rd = sum((R(o) for o in ops), [])
            else:
                self.wr = R(ops[0]) if ops else []; self.rd = sum((R(o) for o in ops[1:]), [])
                if "saveexec" in mn: self.wr.append(("s", "exec"))
        else:
            raise ValueError("unknown instr: " + text)
    def states(self):
        if self.mn == "s_nop": return int(self.ops[0], 0) + 1
        return 1

def need(p, c):
    n = 0
    pw = set(p.wr); cr = set(c.rd); cw = set(c.wr)
    vec = lambda S: {r for r in S if r[0] in "va"}
    sc = lambda S: {r for r in S if r[0] == "s"}
    if p.kind == "valu":
        if c.kind == "mfma" and vec(pw) & cr: n = max(n, 2)
        if c.kind == "vmem" and sc(pw) & cr: n = max(n, 5)
        if c.kind == "valu":
            if sc(pw) & cr:
                if c.mn in ("v_readlane_b32", "v_writelane_b32"): n = max(n, 4)
                else: n = max(n, 2)
            if vec(pw) & cr:
                if c.mn in ("v_readfirstlane_b32", "v_readlane_b32"): n = max(n, 1)
                if c.dpp or c.mn.startswith("v_permlane"): n = max(n, 2)
                if p.mn in TRANS and c.mn not in TRANS: n = max(n, 1)
                if "op_sel" in p.text or "sdwa" in p.mn: n = max(n, 1)
            if ("s", "exec") in pw and c.dpp: n = max(n, 5)
        if c.kind == "mfma" and ("s", "exec") in pw: n = max(n, 4)
        if c.kind == "salu" and sc(pw) & cr: n = max(n, 1)
    if p.kind == "valu" and p.mn.startswith("v_dot"):
        if c.kind in ("valu", "mfma", "vmem", "ds") and vec(pw) & (cr | cw):
            same = (c.mn == p.mn)
            if same:
                ab = set(regs_of(c.ops[1]) + regs_of(c.ops[2]))
                if pw & ab: n = max(n, 3)
            else: n = max(n, 3)
    if p.kind == "mfma":
        P = p.passes
        if c.kind == "mfma":
            cC = set(c.srcC); AB = set(regs_of(c.ops[1]) + regs_of(c.ops[2]))
            if pw & cC:
                if not (pw == cC and c.passes == P): n = max(n, P + 2)
            if pw & AB: n = max(n, P + 4)
            if pw & cw and not (pw & cC): n = max(n, P + 2)
        elif c.kind in ("valu", "vmem", "ds"):
            if pw & (cr | cw): n = max(n, P + 4)
            if c.kind == "valu" and set(p.srcC) & cw: n = max(n, P - 1)
    if p.kind == "salu":
        if ("s", "m0") in pw and c.kind == "vmem" and ("s", "m0") in cr: n = max(n, 1)
    if p.kind == "vmem" and ("store" in p.mn or "atomic" in p.mn) and ("x4" in p.mn or "x3" in p.mn):
        if vec(set(p.rd)) & cw: n = max(n, 2)
    return n

class Asm:
    def __init__(self):
        self.items = []
        self.vmlist = []
        self.bg = []; self.bg_every = 4; self._bgc = 0; self._in_bg = False
    def __call__(self, text):
        for line in text.split("\n"):
            t = line.strip()
            if not t or t.startswith(";"):
                if t: self.items.append(("r", "    " + t))
                continue
            if t.endswith(":"): self.items.append(("l", t[:-1])); continue
            self.items.append(("i", Ins(t)))
            if self.bg and not self._in_bg and (t.startswith("v_") or t.startswith("ds_")) and not t.startswith(("v_cmp", "v_readfirstlane", "v_mfma")):
                self._bgc += 1
                if self._bgc >= self.bg_every:
                    self._bgc = 0; self._in_bg = True
                    self.bg.pop(0)()
                    self._in_bg = False
    def label(self, l): self.items.append(("l", l))
    def bg_flush(self):
        f, self.bg = self.bg, []
        self._in_bg = True
        for x in f: x()
        self._in_bg = False
    def vm(self, tag, text):
        self(text); self.vmlist.append(tag)
    def vm_younger(self, tag):
        idx = max(i for i, t in enumerate(self.vmlist) if t == tag)
        return len(self.vmlist) - 1 - idx
    def wait_vm(self, tag, extra=""):
        n = self.vm_younger(tag)
        assert n <= 63, (tag, n)
        self(f"s_waitcnt vmcnt({n}) {extra}".strip())
        return n
    def raw(self, t): self.items.append(("r", t))
    def comment(self, t): self.items.append(("r", "    ; " + t))
    def fix_hazards(self, window=24):
        out = []
        hist = []
        labels = {}
        inserted = 0
        for kind, it in self.items:
            if kind != "i":
                if kind == "l": labels[it] = len(out)
                out.append((kind, it)); continue
            req = 0; dist = 0
            for p in reversed(hist[-window:]):
                r = need(p, it) - dist
                req = max(req, r)
                dist += p.states()
                if dist >= 20: break
            while req > 0:
                k = min(req, 16)
                nop = Ins(f"s_nop {k-1}"); out.append(("i", nop)); hist.append(nop); req -= k; inserted += 1
            out.append(("i", it)); hist.append(it)
        ins_idx = [i for i, (k, _) in enumerate(out) if k == "i"]
        for i, (k, it) in enumerate(out):
            if k == "i" and it.mn.startswith(("s_cbranch", "s_branch")):
                tgt = it.ops[0]
                if tgt in labels:
                    lp = [j for j, (kk, x) in enumerate(out) if kk == "l" and x == tgt][0]
                    tail = [x for kk, x in out[max(0, i - 40):i + 1] if kk == "i"]
                    head = [x for kk, x in out[lp:lp + 40] if kk == "i"]
                    d_head = 0
                    for c in head:
                        dist = d_head
                        for p in reversed(tail):
                            if need(p, c) > dist:
                                raise RuntimeError(f"hazard across branch to {tgt}: {p.text} -> {c.text} need {need(p,c)} have {dist}")
                            dist += p.states()
                            if dist >= 20: break
                        d_head += c.states()
                        if d_head >= 20: break
        self.items = out
        return inserted
    def text(self):
        o = []
        for kind, it in self.items:
            if kind == "i": o.append("    " + it.text)
            elif kind == "l": o.append(it + ":")
            else: o.append(it)
        return "\n".join(o) + "\n"
    def maxreg(self):
        mv = ma = ms = -1
        for kind, it in self.items:
            if kind == "i":
                for r in it.wr + it.rd:
                    if isinstance(r[1], int):
                        if r[0] == "v": mv = max(mv, r[1])
                        if r[0] == "a": ma = max(ma, r[1])
                        if r[0] == "s": ms = max(ms, r[1])
        return mv, ma, ms

def kernel_text(name, asm, lds_note=""):
    asm.fix_hazards()
    mv, ma, ms = asm.maxreg()
    accum = ((mv + 1 + 3) // 4) * 4
    accum = max(accum, 4)
    nfv = accum + (ma + 1) if ma >= 0 else mv + 1
    body = f""".text
.globl {name}
.p2align 8
.type {name},@function
{name}:
{asm.text()}"""
    kd = f""".section .rodata,"a"
.p2align 6
.amdhsa_kernel {name}
  .amdhsa_next_free_vgpr {nfv}
  .amdhsa_next_free_sgpr {max(ms + 1, 16)}
  .amdhsa_accum_offset {accum}
  .amdhsa_group_segment_fixed_size 0
  .amdhsa_kernarg_size 112
  .amdhsa_user_sgpr_count 2
  .amdhsa_user_sgpr_kernarg_segment_ptr 1
  .amdhsa_system_sgpr_workgroup_id_x 1
  .amdhsa_float_denorm_mode_32 3
.end_amdhsa_kernel
"""
    return body, kd
```

```python
import sys
from asmgen import *
KN = "parallel_sum__ssm_conv_h3__dense_activation_squared_relu__prompt"
S, D, F = 2048, 512, 1792
WS_KVT  = 0
WS_YT   = 2 << 20
WS_H    = 4 << 20
H_BYTES = S*F*2
WS_STAT = 12 << 20
WS_CS   = WS_STAT + 65536
WS_FLAG = 13 << 20
F2, F3, F4 = 256, 512, 768
WS_STAMP = 64 << 20
P_Q, P_K, P_V, P_SK, P_HH, P_DD, P_BX, P_W1, P_B1, P_W2, P_B2, P_OUT, P_DBG, P_WS = [4+2*i for i in range(14)]
S_WAVE, S_NONCE = 32, 33
OOB = 0x7ff00000
STAMPS = False
NSTAMP = 11
OPT = dict(codepf=True, outsc1=False, rot=False, bgevery=5, start=2, f4set=4, f4chk=19)
DETAIL = None
def stamp(A, idx):
    if STAMPS and DETAIL is None: A(f"s_memrealtime s[{80+2*idx}:{81+2*idx}]")
    if STAMPS and DETAIL is not None and idx == 0: A("s_memrealtime s[80:81]")
def dstamp(A, name):
    if STAMPS and DETAIL is not None and name in DETAIL: A(f"s_memrealtime s[{80+2*DETAIL[name]}:{81+2*DETAIL[name]}]")
    if STAMPS and DETAIL is not None and ("c" + name) in DETAIL: A(f"s_memtime s[{80+2*DETAIL['c'+name]}:{81+2*DETAIL['c'+name]}]")
def stamp_flush(A):
    if not STAMPS: return
    A("s_waitcnt lgkmcnt(0)")
    A(f"s_add_u32 s60, {s(P_WS)}, {WS_STAMP}"); A(f"s_addc_u32 s61, {s(P_WS+1)}, 0")
    A("s_lshl_b32 s62, s2, 9")
    A("v_lshrrev_b32 v4, 6, v0"); A("v_lshlrev_b32 v4, 7, v4"); A("v_add_u32 v4, s62, v4")
    for i in range(NSTAMP):
        A(f"v_mov_b32 v6, s{80+2*i}"); A(f"v_mov_b32 v7, s{81+2*i}")
        A(f"global_store_dwordx2 v4, v[6:7], s[60:61] offset:{8*i}")

def srd(A, r, base, size, off=0):
    if off:
        A(f"s_add_u32 {s(r)}, {s(base)}, {off}"); A(f"s_addc_u32 {s(r+1)}, {s(base+1)}, 0")
    else:
        A(f"s_mov_b32 {s(r)}, {s(base)}"); A(f"s_mov_b32 {s(r+1)}, {s(base+1)}")
    A(f"s_mov_b32 {s(r+2)}, {size}"); A(f"s_mov_b32 {s(r+3)}, 0x00020000")
def round_bf16(A, x):
    A(f"v_cvt_pk_bf16_f32 {v(x)}, {v(x)}, {v(x)}"); A(f"v_lshlrev_b32 {v(x)}, 16, {v(x)}")
_lbl = [0]
def newlabel(p):
    _lbl[0] += 1; return f"L_{p}_{_lbl[0]}"
def emit(A, it):
    if it is None: return
    if callable(it): it()
    elif isinstance(it, (list, tuple)):
        for x in it: emit(A, x)
    else: A(it)
def weave(A, main, fillers, per):
    f = list(fillers)
    for i, m in enumerate(main):
        emit(A, m)
        n = per[i] if isinstance(per, (list, tuple)) else per
        for _ in range(n):
            if f: emit(A, f.pop(0))
    for x in f: emit(A, x)

SR_FLAG = 76
SPIN_LIMIT = 20000
def flag_issue(A, tag, vdst, vaddr):
    A.vm(tag, f"buffer_load_dword {v(vdst)}, {v(vaddr)}, {s(SR_FLAG,4)}, 0 offen sc1")
def spin_until(A, name, cmp_emit, reload_emit):
    ok = newlabel(name + "_ok"); lp = newlabel(name + "_spin")
    cmp_emit()
    A(f"s_cbranch_vccz {ok}")
    A("s_mov_b32 s60, 0")
    A.label(lp)
    A("s_sleep 1")
    reload_emit()
    A("s_add_u32 s60, s60, 1")
    A("s_waitcnt vmcnt(0)")
    cmp_emit()
    A(f"s_cmp_gt_u32 s60, {SPIN_LIMIT}")
    A(f"s_cbranch_scc1 {ok}")
    A(f"s_cbranch_vccnz {lp}")
    A.label(ok)
def flag_check(A, vdst, vaddr, name):
    spin_until(A, name, lambda: A(f"v_cmp_ne_u32 vcc, {s(S_NONCE)}, {v(vdst)}"),
               lambda: A(f"buffer_load_dword {v(vdst)}, {v(vaddr)}, {s(SR_FLAG,4)}, 0 offen sc1"))
def flag_set(A, vt, wave=0):
    sk = newlabel("fs")
    bg, A.bg = A.bg, []
    A(f"s_cmp_lg_u32 {s(S_WAVE)}, {wave}"); A(f"s_cbranch_scc1 {sk}")
    A(f"v_mov_b32 {v(vt)}, s61"); A(f"v_mov_b32 {v(vt+1)}, {s(S_NONCE)}")
    A("s_mov_b64 exec, 1")
    A(f"buffer_store_dword {v(vt+1)}, {v(vt)}, {s(SR_FLAG,4)}, 0 offen sc1")
    A("s_mov_b64 exec, -1")
    A.label(sk)
    A.bg = bg
def nonce_check(A, vt):
    lp = newlabel("nonce"); ok = newlabel("nonce_ok")
    A(f"v_readfirstlane_b32 {s(S_NONCE)}, {v(vt+1)}")
    A(f"s_cmp_lg_u32 {s(S_NONCE)}, 0")
    A(f"s_cbranch_scc1 {ok}")
    A("s_mov_b32 s60, 0")
    A.label(lp)
    A("s_sleep 1")
    A(f"global_load_dword {v(vt+1)}, {v(vt)}, {s(P_DBG,2)} sc1")
    A("s_add_u32 s60, s60, 1")
    A("s_waitcnt vmcnt(0)")
    A(f"v_readfirstlane_b32 {s(S_NONCE)}, {v(vt+1)}")
    A(f"s_cmp_gt_u32 s60, {SPIN_LIMIT}")
    A(f"s_cbranch_scc1 {ok}")
    A(f"s_cmp_eq_u32 {s(S_NONCE)}, 0")
    A(f"s_cbranch_scc1 {lp}")
    A.label(ok)

G1_SLOT = 32768
KVL = 131072
KVG = 1040
LDS_CSX = KVL
CONV_COPY = 4160
CONV_HC   = 4*CONV_COPY
CONV_U    = 512 + 4096
LDS_HC = 0
LDS_U  = 2*CONV_HC
CONV_END = LDS_U + 2*CONV_U
LDS_RED = 0
LDS_YO = 16384
DW = 14
DH = 14
G2_RING = CONV_END
G2_XT   = 24576
G2_YT   = G2_XT + 8192
G2_XCH  = G2_RING
LDS_TOTAL = G2_RING + 4*DW*2048

def conv_ids(A):
    A(f"s_lshr_b32 s71, {s(S_WAVE)}, 1"); A(f"s_and_b32 s72, {s(S_WAVE)}, 1")
    A("s_and_b32 s60, s2, 7"); A("s_lshl_b32 s73, s60, 6"); A("s_lshr_b32 s60, s2, 3"); A("s_lshl_b32 s60, s60, 1")
    A("s_add_u32 s73, s73, s60"); A("s_add_u32 s73, s73, s71")
    A("s_lshl_b32 s74, s73, 12")
def conv_h_loads(A):
    A(f"s_add_u32 s36, {s(P_HH)}, s74"); A(f"s_addc_u32 s37, {s(P_HH+1)}, 0"); A("s_mov_b32 s38, 4096"); A("s_mov_b32 s39, 0x00020000")
    A("v_and_b32 v4, 127, v0"); A("v_lshlrev_b32 v5, 4, v4")
    A("v_subrev_u32 v6, 32, v5"); A("v_subrev_u32 v7, 16, v5")
    A(f"v_mov_b32 v8, {OOB}")
    A("v_cmp_gt_u32 vcc, 2, v4"); A("v_cndmask_b32 v9, v6, v8, vcc")
    A("v_cmp_gt_u32 vcc, 1, v4"); A("v_cndmask_b32 v10, v7, v8, vcc")
    A.vm("h", "buffer_load_dwordx4 v[196:199], v9, s[36:39], 0 offen")
    A.vm("h", "buffer_load_dwordx4 v[200:203], v10, s[36:39], 0 offen")
    A("v_add_u32 v6, 2048, v6"); A("v_add_u32 v7, 2048, v7")
    A.vm("h", "buffer_load_dwordx4 v[204:207], v6, s[36:39], 0 offen")
    A.vm("h", "buffer_load_dwordx4 v[208:211], v7, s[36:39], 0 offen")
    A("v_add_u32 v6, 2048, v6"); A("v_add_u32 v7, 2048, v7")
    A.vm("h", "buffer_load_dwordx4 v[212:215], v6, s[36:39], 0 offen")
    A.vm("h", "buffer_load_dwordx4 v[216:219], v7, s[36:39], 0 offen")
    A(f"s_mov_b32 s36, {s(P_DD)}"); A(f"s_mov_b32 s37, {s(P_DD+1)}"); A(f"s_mov_b32 s38, {D*2}")
    A("s_lshl_b32 s60, s73, 1"); A("v_mov_b32 v4, s60")
    A.vm("h", "buffer_load_ushort v60, v4, s[36:39], 0 offen")
def f2_issue(A):
    A("s_and_b32 s60, s2, 7"); A(f"s_add_u32 s60, s60, {F2}"); A("s_lshl_b32 s60, s60, 7")
    A("v_and_b32 v61, 31, v1"); A("v_lshlrev_b32 v61, 10, v61"); A("v_add_u32 v61, s60, v61")
    flag_issue(A, "F2", 62, 61)
def u_loads(A):
    A(f"s_add_u32 s36, {s(P_WS)}, s74"); A(f"s_addc_u32 s37, {s(P_WS+1)}, 0"); A("s_mov_b32 s38, 4096"); A("s_mov_b32 s39, 0x00020000")
    A("s_lshl_b32 s60, s72, 11"); A("v_lshlrev_b32 v4, 4, v1"); A("v_add_u32 v4, s60, v4")
    A.vm("U", "buffer_load_dwordx4 v[220:223], v4, s[36:39], 0 offen sc1")
    A.vm("U", "buffer_load_dwordx4 v[224:227], v4, s[36:39], 0 offen offset:1024 sc1")

def hc_build_items(A):
    L = []
    L.append(f"s_mul_i32 s68, s71, {CONV_U}"); L.append(f"s_add_u32 s68, s68, {LDS_U + 512}")
    L.append(f"s_mul_i32 s69, s71, {CONV_HC}")
    L.append("v_and_b32 v4, 127, v0"); L.append("v_lshlrev_b32 v5, 4, v4"); L.append("v_add_u32 v35, s69, v5")
    def build(P, W, off):
        L.append(f"ds_write_b128 v35, {v(P,4)} offset:{off}")
        seq = [P, P+1, P+2, P+3, W, W+1]
        for i in range(4): L.append(f"v_alignbit_b32 {v(40+i)}, {v(seq[i+1])}, {v(seq[i])}, 16")
        L.append(f"ds_write_b128 v35, v[40:43] offset:{off + CONV_COPY}")
        for i in range(4): L.append(f"v_mov_b32 {v(44+i)}, {v(seq[i+1])}")
        L.append(f"ds_write_b128 v35, v[44:47] offset:{off + 2*CONV_COPY}")
        for i in range(4): L.append(f"v_alignbit_b32 {v(48+i)}, {v(seq[i+2])}, {v(seq[i+1])}, 16")
        L.append(f"ds_write_b128 v35, v[48:51] offset:{off + 3*CONV_COPY}")
    build(196, 200, 0); build(204, 208, 2048)
    return L, build

def gen():
    A = Asm()
    A("s_cmp_ge_u32 s2, 256")
    A("s_cbranch_scc1 L_end")
    stamp(A, 0)
    A("s_load_dwordx16 s[4:19], s[0:1], 0")
    A("s_load_dwordx8 s[20:27], s[0:1], 64")
    A("s_load_dwordx4 s[28:31], s[0:1], 96")
    A("s_memrealtime s[34:35]")
    A("v_and_b32 v1, 63, v0")
    A("v_lshrrev_b32 v2, 6, v0")
    if OPT["codepf"]:
        A("s_getpc_b64 s[62:63]")
        A.label("L_pc")
    A(f"v_readfirstlane_b32 {s(S_WAVE)}, v2")
    A("s_lshr_b32 s60, s2, 3"); A("s_and_b32 s61, s2, 7")
    A("v_lshrrev_b32 v8, 3, v1"); A("v_and_b32 v10, 7, v1")
    A("v_lshlrev_b32 v12, 10, v8"); A("v_lshl_add_u32 v12, v10, 4, v12")
    A("s_lshl_b32 s64, s60, 16"); A("s_lshl_b32 s65, s61, 7"); A("s_add_u32 s64, s64, s65")
    A(f"s_lshl_b32 s65, {s(S_WAVE)}, 13"); A("s_add_u32 s65, s65, s64")
    A("v_add_u32 v13, s65, v12")
    A("v_add_u32 v14, 32768, v13")
    A("s_sub_u32 s65, s64, 8192"); A("s_cmp_eq_u32 s60, 0"); A(f"s_cselect_b32 s65, {OOB}, s65")
    A("v_add_u32 v15, s65, v12")
    if OPT["codepf"]:
        A("s_lshl_b32 s66, s60, 10"); A("v_lshl_add_u32 v16, v1, 4, s66")
        A("v_mov_b32 v17, s63"); A("v_add_co_u32 v16, vcc, s62, v16"); A("v_addc_co_u32 v17, vcc, 0, v17, vcc")
    A("s_waitcnt lgkmcnt(0)")
    srd(A, 36, P_K, S*D*2); srd(A, 40, P_V, S*D*2)
    A(f"s_mul_i32 s66, {s(S_WAVE)}, {KVG}"); A(f"s_add_u32 s66, s66, {KVL}")
    A(f"s_mov_b32 m0, {KVL}");                   A.vm("kv", "buffer_load_dwordx4 v15, s[36:39], 0 offen lds")
    A(f"s_add_u32 m0, s66, {KVG}");              A.vm("kv", "buffer_load_dwordx4 v13, s[36:39], 0 offen lds")
    A(f"s_add_u32 m0, s66, {5*KVG}");            A.vm("kv", "buffer_load_dwordx4 v14, s[36:39], 0 offen lds")
    A(f"s_add_u32 m0, s66, {9*KVG}");            A.vm("kv", "buffer_load_dwordx4 v13, s[40:43], 0 offen lds")
    A(f"s_add_u32 m0, s66, {13*KVG}");           A.vm("kv", "buffer_load_dwordx4 v14, s[40:43], 0 offen lds")
    srd(A, 44, P_SK, D*4*2)
    A("v_lshl_add_u32 v13, v2, 3, v8")
    A("s_lshl_b32 s65, s61, 9"); A("v_lshlrev_b32 v14, 4, v13"); A("v_add_u32 v14, s65, v14")
    A.vm("kv", "buffer_load_dwordx4 v[40:43], v14, s[44:47], 0 offen")
    A(f"s_cmp_lg_u32 {s(S_WAVE)}, 0"); A("s_cbranch_scc1 L_now0")
    if OPT["codepf"]:
        A("s_cmp_ge_u32 s60, (L_end-L_pc)>>10"); A("s_cbranch_scc1 L_nopf")
        A("global_load_dwordx4 v[20:23], v[16:17], off")
        A.label("L_nopf")
    A("s_cmp_lg_u32 s2, 0"); A("s_cbranch_scc1 L_now0")
    A("s_or_b32 s34, s34, 1"); A("v_mov_b32 v3, 0"); A("v_mov_b32 v4, s34")
    A("s_mov_b64 exec, 1")
    A(f"global_store_dword v3, v4, {s(P_DBG,2)} sc1")
    A("s_mov_b64 exec, -1")
    A.label("L_now0")
    srd(A, SR_FLAG, P_WS, 1024*128, WS_FLAG)
    base_vm = list(A.vmlist)
    KR, VR = 20, 32
    def kv_compute(fillers):
        A("s_barrier")
        A("v_mov_b32 v54, 0")
        A.vm("nonce", f"global_load_dword v55, v54, {s(P_DBG,2)} sc1")
        stamp(A, 1)
        A("v_and_b32 v12, 7, v1")
        A(f"v_mul_u32_u24 v14, {KVG}, v12"); A("v_lshl_add_u32 v14, v13, 2, v14"); A(f"v_add_u32 v14, {KVL}, v14")
        for j in range(3): A(f"ds_read_b32 {v(KR+j)}, v14 offset:{(5+j)*128}")
        for j in range(8): A(f"ds_read_b32 {v(KR+3+j)}, v14 offset:{KVG + 128*j}")
        for j in range(8): A(f"ds_read_b32 {v(VR+j)}, v14 offset:{9*KVG + 128*j}")
        SK, KF, U = 56, 196, 220
        L = []
        for c in range(2):
            for h in range(2):
                L.append(f"v_lshlrev_b32 {v(SK+4*c+2*h)}, 16, {v(40+2*c+h)}")
                L.append(f"v_and_b32 {v(SK+4*c+2*h+1)}, 0xffff0000, {v(40+2*c+h)}")
        L.append("s_waitcnt lgkmcnt(8)")
        for j in range(11):
            L.append(f"v_lshlrev_b32 {v(KF+j)}, 16, {v(KR+j)}"); L.append(f"v_and_b32 {v(KF+11+j)}, 0xffff0000, {v(KR+j)}")
        for c in range(2):
            for t in range(8):
                kk = KF + 11*c
                L.append(f"v_mul_f32 {v(U+8*c+t)}, {v(kk+t+3)}, {v(SK+4*c+0)}")
                for j in range(1, 4): L.append(f"v_fmac_f32 {v(U+8*c+t)}, {v(kk+t+3-j)}, {v(SK+4*c+j)}")
        L.append("s_waitcnt lgkmcnt(0)")
        for t in range(8):
            L.append(f"v_lshlrev_b32 v5, 16, {v(VR+t)}"); L.append(f"v_and_b32 v6, 0xffff0000, {v(VR+t)}")
            L.append(f"v_mul_f32 {v(U+t)}, {v(U+t)}, v5"); L.append(f"v_mul_f32 {v(U+8+t)}, {v(U+8+t)}, v6")
        for c in range(2):
            for i in range(4):
                L.append(f"v_cvt_pk_bf16_f32 {v(236+4*c+i)}, {v(U+8*c+7-2*i)}, {v(U+8*c+6-2*i)}")
        step = max(1, len(L) // (len(fillers) + 1))
        f = list(fillers)
        for n_, l in enumerate(L):
            A(l)
            if n_ % step == step-1 and f: emit(A, f.pop(0))
        for x in f: emit(A, x)
        srd(A, 36, P_WS, S*D*2, WS_KVT)
        A("s_lshr_b32 s60, s2, 3"); A("s_and_b32 s61, s2, 7")
        A("s_lshl_b32 s62, s61, 18"); A("s_lshl_b32 s63, s60, 7"); A("s_add_u32 s62, s62, s63")
        A("v_lshlrev_b32 v17, 13, v13"); A("v_lshl_add_u32 v17, v12, 4, v17"); A("v_add_u32 v17, s62, v17")
        A.vm("kvst", "buffer_store_dwordx4 v[236:239], v17, s[36:39], 0 offen sc1")
        A("v_add_u32 v17, 4096, v17")
        A.vm("kvst", "buffer_store_dwordx4 v[240:243], v17, s[36:39], 0 offen sc1")
        stamp(A, 2)
    A("s_cmp_ge_u32 s2, 224")
    A("s_cbranch_scc1 L_stats")
    A("s_and_b32 s60, s2, 7"); A("s_lshr_b32 s61, s2, 3")
    A("s_lshr_b32 s64, s60, 1"); A("s_lshl_b32 s64, s64, 2"); A("s_and_b32 s62, s61, 3"); A("s_add_u32 s64, s64, s62")
    A("s_and_b32 s65, s60, 1"); A("s_mul_i32 s65, s65, 7"); A("s_lshr_b32 s62, s61, 2"); A("s_add_u32 s65, s65, s62")
    A(f"s_lshr_b32 s66, {s(S_WAVE)}, 1"); A(f"s_and_b32 s67, {s(S_WAVE)}, 1")
    srd(A, 48, P_Q, S*D*2); srd(A, 52, P_W1, D*F*2)
    A("v_lshrrev_b32 v9, 4, v1")
    A("v_xor_b32 v11, v10, v9"); A("v_lshlrev_b32 v11, 4, v11"); A("v_lshl_add_u32 v11, v8, 10, v11")
    A("s_lshl_b32 s62, s64, 17"); A(f"s_lshl_b32 s63, {s(S_WAVE)}, 15"); A("s_add_u32 s62, s62, s63")
    A("v_add_u32 v44, s62, v11")
    A("v_xor_b32 v45, 64, v44"); A("v_add_u32 v45, 8192, v45")
    A("v_add_u32 v46, 16384, v44"); A("v_add_u32 v47, 16384, v45")
    A("v_and_b32 v11, 15, v1"); A("v_lshlrev_b32 v16, 2, v9"); A("v_xor_b32 v11, v11, v16"); A("v_lshlrev_b32 v11, 4, v11")
    A("v_mul_u32_u24 v16, 3584, v9"); A("v_add_u32 v11, v11, v16")
    A(f"s_mul_i32 s62, {s(S_WAVE)}, {16*3584}"); A("s_lshl_b32 s63, s65, 8"); A("s_add_u32 s62, s62, s63")
    A("v_add_u32 v48, s62, v11")
    for u in range(1, 4): A(f"v_add_u32 {v(48+u)}, {4*3584*u}, v48")
    A(f"s_lshl_b32 s68, {s(S_WAVE)}, 12")
    def g1_dma(st, u):
        slot = st & 3
        if u < 4:
            A(f"s_add_u32 m0, s68, {slot*G1_SLOT + 1024*u}")
            A.vm(f"D{st}", f"buffer_load_dwordx4 {v(44+u)}, s[48:51], s69 offen lds")
        else:
            A(f"s_add_u32 m0, s68, {slot*G1_SLOT + 16384 + 1024*(u-4)}")
            A.vm(f"D{st}", f"buffer_load_dwordx4 {v(48+u-4)}, s[52:55], s70 offen lds")
        if u == 7:
            if OPT["rot"]:
                A("s_add_u32 s34, s34, 1"); A("s_and_b32 s34, s34, 7")
                A("s_lshl_b32 s69, s34, 7"); A(f"s_mul_i32 s70, s34, {64*3584}")
            else:
                A("s_add_u32 s69, s69, 128"); A(f"s_add_u32 s70, s70, {64*3584}")
    A("s_and_b32 s62, s61, 3"); A("s_lshl_b32 s62, s62, 1"); A("s_lshr_b32 s63, s61, 2"); A("s_add_u32 s34, s62, s63"); A("s_and_b32 s34, s34, 7")
    if not OPT["rot"]: A("s_mov_b32 s34, 0")
    A("s_lshl_b32 s69, s34, 7"); A(f"s_mul_i32 s70, s34, {64*3584}")
    dstamp(A, "g1issue0")
    for u in range(8): g1_dma(0, u)
    if OPT["start"] == 0:
        for u in range(8): g1_dma(1, u)
    dstamp(A, "issued")
    A("v_lshrrev_b32 v8, 5, v1")
    A("v_and_b32 v10, 31, v1"); A("v_bfe_u32 v11, v1, 1, 3")
    A("s_lshl_b32 s62, s67, 13")
    A("v_lshlrev_b32 v16, 7, v10"); A("v_add_u32 v16, s62, v16")
    FB = 112
    for ks in range(4):
        A(f"v_add_u32 v17, {2*ks}, v8"); A("v_xor_b32 v17, v17, v11")
        A(f"v_lshl_add_u32 {v(FB+ks)}, v17, 4, v16")
        A(f"v_add_u32 {v(FB+4+ks)}, 0x10000, {v(FB+ks)}")
    A("v_and_b32 v10, 15, v1"); A("v_lshrrev_b32 v11, 2, v10"); A("v_bfe_u32 v16, v1, 4, 1")
    A("v_lshl_add_u32 v17, v8, 3, v11"); A("v_lshlrev_b32 v17, 8, v17")
    A("v_bfe_u32 v18, v1, 1, 1"); A("v_lshl_add_u32 v18, v16, 1, v18"); A("v_lshl_add_u32 v17, v18, 4, v17")
    A("v_and_b32 v18, 1, v1"); A("v_lshl_add_u32 v17, v18, 3, v17"); A("v_add_u32 v17, 16384, v17")
    for ft in range(2):
        A("s_lshl_b32 s62, s66, 1"); A(f"s_add_u32 s62, s62, {ft}")
        A("v_xor_b32 v18, s62, v11")
        A(f"v_lshl_add_u32 {v(FB+8+ft)}, v18, 6, v17")
        A(f"v_add_u32 {v(FB+10+ft)}, 0x10000, {v(FB+8+ft)}")
    ACC = 128
    for i in range(64): A(f"v_mov_b32 {v(ACC+i)}, 0")
    FA = [64, 80]
    def frag_reads(st, ks, setb):
        slot = st & 3; hi = slot >= 2; so = (slot & 1)*G1_SLOT
        L = []
        for ft in range(2):
            ra = FB + (10 if hi else 8) + ft
            L.append(f"ds_read_b64_tr_b16 {v(setb+4*ft,2)}, {v(ra)} offset:{so + 4096*ks}")
            L.append(f"ds_read_b64_tr_b16 {v(setb+4*ft+2,2)}, {v(ra)} offset:{so + 4096*ks + 1024}")
        for tt in range(2):
            rb_ = FB + (4 if hi else 0) + ks
            L.append(f"ds_read_b128 {v(setb+8+4*tt,4)}, {v(rb_)} offset:{so + 4096*tt}")
        return L
    srd(A, 40, P_WS, 65536 + F*8, WS_STAT); srd(A, 56, P_B1, F*2)
    A("v_and_b32 v96, 31, v1")
    A("s_lshl_b32 s62, s64, 7"); A("s_lshl_b32 s63, s67, 6"); A("s_add_u32 s62, s62, s63")
    A("v_add_u32 v97, s62, v96"); A("v_lshlrev_b32 v97, 3, v97")
    A("s_lshl_b32 s62, s65, 7"); A("s_lshl_b32 s63, s66, 6"); A("s_add_u32 s62, s62, s63")
    A("v_add_u32 v98, s62, v96")
    A("v_lshlrev_b32 v99, 3, v98"); A("v_add_u32 v99, 65536, v99")
    A("v_lshlrev_b32 v98, 1, v98")
    conv_ids(A)
    A.wait_vm("kv")
    if OPT["start"] == 0: kv_compute([(lambda st=st, u=u: g1_dma(st, u)) for st in (2, 3) for u in range(8)])
    elif OPT["start"] == 1: kv_compute([(lambda u=u: g1_dma(1, u)) for u in range(8)])
    else: kv_compute([(lambda st=st, u=u: g1_dma(st, u)) for st in (1, 2, 3) for u in range(8)])
    A.wait_vm("D0")
    A("s_barrier")
    stamp(A, 3)
    for l in frag_reads(0, 0, FA[0]): A(l)
    def stat_loads(tr=True):
        L = ["buffer_load_dwordx2 v[100:101], v97, s[40:43], 0 offen sc1",
             "buffer_load_dwordx2 v[102:103], v97, s[40:43], 0 offen offset:256 sc1",
             "buffer_load_dwordx2 v[104:105], v99, s[40:43], 0 offen sc1",
             "buffer_load_dwordx2 v[106:107], v99, s[40:43], 0 offen offset:256 sc1"]
        for l in L:
            if tr: A.vm("aug", l)
            else: A(l)
    for st in range(8):
        for ks in range(4):
            p = 4*st + ks
            cur = FA[p & 1]; nxt = FA[(p+1) & 1]
            extra = []
            if ks == 3 and st < 7:
                dstamp(A, f"preB{st+1}")
                A.wait_vm(f"D{st+1}")
                A("s_barrier")
                dstamp(A, f"B{st+1}")
                if st == 3:
                    nonce_check(A, 54)
                    A("s_lshl_b32 s61, s2, 7"); A(f"s_add_u32 s61, s61, {F2*128}")
                    flag_set(A, 4)
                if st == 4:
                    f2_issue(A)
                if st == 5:
                    extra = [lambda: conv_h_loads(A)]
                if st == 6:
                    flag_check(A, 62, 61, "f2")
                    dstamp(A, "f2ok")
                    u_loads(A)
                    A.vm("aug", "buffer_load_ushort v108, v98, s[56:59], 0 offen")
                    A.vm("aug", "buffer_load_ushort v109, v98, s[56:59], 0 offen offset:64")
                    stat_loads()
            last = (st == 7 and ks == 3)
            r = [] if last else (frag_reads(st, ks+1, nxt) if ks < 3 else frag_reads(st+1, 0, nxt))
            if ks == 3: q, part = st, 0
            else: q, part = st-1, ks+1
            d = [(q+3, 2*part), (q+3, 2*part+1)] if (q >= (0 if OPT["start"] == 1 else 1) and q+3 <= 7) else []
            if st == 0 and ks < 3 and OPT["start"] == 1: d = [(2, u) for u in ((0, 1, 2), (3, 4, 5), (6, 7))[ks]]
            A("s_waitcnt lgkmcnt(0)")
            if last: A("s_barrier")
            mf = [f"v_mfma_f32_32x32x16_bf16 {v(ACC+32*a_+16*tt,16)}, {v(cur+4*a_,4)}, {v(cur+8+4*tt,4)}, {v(ACC+32*a_+16*tt,16)}" for a_ in range(2) for tt in range(2)]
            for m_i, m_ in enumerate(mf):
                A(m_)
                for _ in range(2):
                    if r: A(r.pop(0))
                if (m_i in (1, 3) or (m_i == 2 and len(d) == 2 and st == 0 and ks < 2)) and d: g1_dma(*d.pop(0))
            assert not d
            for x in extra: emit(A, x)
    stamp(A, 4)
    A.wait_vm("aug")
    def st_cmp():
        A(f"v_cmp_ne_u32 vcc, {s(S_NONCE)}, v101"); A("s_mov_b64 s[62:63], vcc")
        A(f"v_cmp_ne_u32 vcc, {s(S_NONCE)}, v103"); A("s_or_b64 s[62:63], vcc, s[62:63]")
        A(f"v_cmp_ne_u32 vcc, {s(S_NONCE)}, v105"); A("s_or_b64 s[62:63], vcc, s[62:63]")
        A(f"v_cmp_ne_u32 vcc, {s(S_NONCE)}, v107"); A("s_or_b64 vcc, vcc, s[62:63]")
    spin_until(A, "stat", st_cmp, lambda: stat_loads(False))
    dstamp(A, "statok")
    AA, BB = 64, 72
    for tt in range(2):
        g = 100 + 2*tt
        A(f"v_and_b32 v4, 0xffff, {v(g)}"); A("v_xor_b32 v4, 0x8000, v4")
        A(f"v_lshl_or_b32 {v(BB+4*tt)}, v4, 16, v4")
        A(f"v_lshrrev_b32 {v(BB+4*tt+1)}, 16, {v(g)}")
        A(f"v_mov_b32 {v(BB+4*tt+2)}, 0"); A(f"v_mov_b32 {v(BB+4*tt+3)}, 0")
    A("v_cmp_gt_u32 vcc, 32, v1")
    for ft in range(2):
        csr = 104 + 2*ft
        A(f"v_cvt_pk_bf16_f32 v4, {v(csr)}, {v(csr)}"); A("v_lshlrev_b32 v4, 16, v4")
        A(f"v_sub_f32 v5, {v(csr)}, v4")
        A(f"v_cvt_pk_bf16_f32 v4, {v(csr)}, v5")
        A(f"v_cndmask_b32 {v(AA+4*ft)}, 0, v4, vcc")
        A(f"v_cndmask_b32 {v(AA+4*ft+1)}, 0, {v(108+ft)}, vcc")
        A(f"v_mov_b32 {v(AA+4*ft+2)}, 0"); A(f"v_mov_b32 {v(AA+4*ft+3)}, 0")
    for ft in range(2):
        for tt in range(2):
            c = ACC+32*ft+16*tt
            A(f"v_mfma_f32_32x32x16_bf16 {v(c,16)}, {v(AA+4*ft,4)}, {v(BB+4*tt,4)}, {v(c,16)}")
    srd(A, 44, P_WS, H_BYTES, WS_H)
    A("s_lshl_b32 s62, s64, 2"); A("s_lshl_b32 s63, s67, 1"); A("s_add_u32 s62, s62, s63"); A("s_mul_i32 s62, s62, 112")
    A("s_lshl_b32 s63, s65, 3"); A("s_add_u32 s62, s62, s63"); A("s_lshl_b32 s63, s66, 2"); A("s_add_u32 s62, s62, s63")
    A("s_lshl_b32 s62, s62, 10")
    A("v_lshlrev_b32 v12, 4, v1"); A("v_add_u32 v12, s62, v12")
    A(f"v_add_u32 v13, {112*1024}, v12")
    A("s_lshl_b32 s75, s64, 4"); A("s_add_u32 s75, s75, s65"); A(f"s_add_u32 s75, s75, {F3}")
    for ft in range(2):
        for tt in range(2):
            c = ACC + 32*ft + 16*tt
            o = 80 + 8*((2*ft+tt) & 1)
            for d_ in range(8):
                A(f"v_max_f32 v16, 0, {v(c+2*d_)}"); A(f"v_max_f32 v17, 0, {v(c+2*d_+1)}")
                A(f"v_pk_mul_f32 {v(c+2*d_,2)}, {v(c+2*d_,2)}, v[16:17]")
                A(f"v_cvt_pk_bf16_f32 {v(o+d_)}, {v(c+2*d_)}, {v(c+2*d_+1)}")
            A.vm("Hst", f"buffer_store_dwordx4 {v(o,4)}, {v(12+tt)}, s[44:47], 0 offen offset:{2048*ft} sc1")
            A.vm("Hst", f"buffer_store_dwordx4 {v(o+4,4)}, {v(12+tt)}, s[44:47], 0 offen offset:{2048*ft+1024} sc1")
    join_n = A.vm_younger("U")
    assert join_n <= 16
    join_list = A.vmlist[len(A.vmlist)-join_n:]
    A("s_branch L_conv")
    A.label("L_stats")
    A.vmlist = list(base_vm)
    A("s_sub_u32 s64, s2, 224")
    srd(A, 48, P_Q, S*D*2); srd(A, 52, P_W1, D*F*2)
    A("v_lshrrev_b32 v9, 4, v1"); A("v_and_b32 v11, 15, v1")
    A("v_lshlrev_b32 v9, 10, v9"); A("v_lshl_add_u32 v9, v11, 4, v9")
    A("s_lshl_b32 s62, s64, 16"); A(f"s_lshl_b32 s63, {s(S_WAVE)}, 14"); A("s_add_u32 s62, s62, s63")
    A("v_add_u32 v44, s62, v9")
    LN = 128
    for g in range(4):
        for i in range(4):
            A.vm(f"ln{g}", f"buffer_load_dwordx4 {v(LN+16*g+4*i,4)}, v44, s[48:51], 0 offen offset:{256*i}")
        if g < 3: A("v_add_u32 v44, 4096, v44")
    A("s_min_u32 s65, s64, 27")
    A("v_lshrrev_b32 v9, 3, v1"); A("v_and_b32 v11, 7, v1")
    A("v_mul_u32_u24 v9, 3584, v9"); A("v_lshl_add_u32 v9, v11, 4, v9")
    A(f"s_mul_i32 s62, {s(S_WAVE)}, {128*3584}"); A("s_lshl_b32 s63, s65, 7"); A("s_add_u32 s62, s62, s63")
    A("v_add_u32 v45, s62, v9")
    CSL = 64
    def cs_load(i):
        A.vm("cs", f"buffer_load_dwordx4 {v(CSL+4*i,4)}, v45, s[52:55], 0 offen")
        if i < 15: A(f"v_add_u32 v45, {8*3584}, v45")
    A.wait_vm("kv")
    kv_compute([])
    for i in range(16): cs_load(i)
    srd(A, 40, P_WS, S*8, WS_STAT)
    A("s_mov_b32 s62, 0x3f803f80")
    for g in range(4):
        A.wait_vm(f"ln{g}")
        A("v_mov_b32 v4, 0"); A("v_mov_b32 v5, 0")
        for i in range(16):
            A(f"v_dot2_f32_bf16 v4, {v(LN+16*g+i)}, s62, v4")
            A(f"v_dot2_f32_bf16 v5, {v(LN+16*g+i)}, {v(LN+16*g+i)}, v5")
        for x in (4, 5):
            A(f"v_add_f32_dpp v6, {v(x)}, {v(x)} quad_perm:[1,0,3,2] row_mask:0xf bank_mask:0xf")
            A(f"v_add_f32_dpp {v(x)}, v6, v6 quad_perm:[2,3,0,1] row_mask:0xf bank_mask:0xf")
            A(f"v_add_f32_dpp v6, {v(x)}, {v(x)} row_half_mirror row_mask:0xf bank_mask:0xf")
            A(f"v_add_f32_dpp {v(x)}, v6, v6 row_mirror row_mask:0xf bank_mask:0xf")
        A("v_mul_f32 v4, 0x3b000000, v4"); A("v_mul_f32 v5, 0x3b000000, v5")
        A("v_fma_f32 v5, -v4, v4, v5"); A("v_max_f32 v5, 0, v5")
        round_bf16(A, 5)
        A("v_add_f32 v5, 0x3727c5ac, v5"); round_bf16(A, 5)
        A("v_sqrt_f32 v5, v5")
        A(f"v_cvt_pk_bf16_f32 {v(228+2*g)}, v4, v5")
    A.wait_vm("nonce")
    nonce_check(A, 54)
    for g in range(4): A(f"v_mov_b32 {v(229+2*g)}, {s(S_NONCE)}")
    A("s_lshl_b32 s62, s64, 6"); A(f"s_lshl_b32 s63, {s(S_WAVE)}, 4"); A("s_add_u32 s62, s62, s63")
    A("v_lshrrev_b32 v8, 4, v1"); A("v_add_u32 v8, s62, v8"); A("v_lshlrev_b32 v8, 3, v8")
    A("v_and_b32 v9, 15, v1"); A("v_cmp_eq_u32 vcc, 0, v9")
    A(f"v_mov_b32 v9, {OOB}"); A("v_cndmask_b32 v8, v9, v8, vcc")
    for g in range(4):
        A.vm("stst", f"buffer_store_dwordx2 {v(228+2*g,2)}, v8, s[40:43], 0 offen offset:{32*g} sc1")
    A.wait_vm("kvst")
    A("s_barrier")
    A("s_lshl_b32 s61, s2, 7"); A(f"s_add_u32 s61, s61, {F2*128}"); flag_set(A, 4)
    A.wait_vm("cs")
    A("s_mov_b32 s62, 0x00003f80"); A("s_mov_b32 s63, 0x3f800000")
    for c in range(8): A(f"v_mov_b32 {v(244+c)}, 0")
    for i in range(16):
        for dw in range(4):
            A(f"v_dot2_f32_bf16 {v(244+2*dw)}, {v(CSL+4*i+dw)}, s62, {v(244+2*dw)}")
            A(f"v_dot2_f32_bf16 {v(244+2*dw+1)}, {v(CSL+4*i+dw)}, s63, {v(244+2*dw+1)}")
    for c in range(8):
        x = 244 + c
        A(f"v_add_f32_dpp {v(x)}, {v(x)}, {v(x)} row_ror:8 row_mask:0xf bank_mask:0xf")
        A(f"v_mov_b32 v6, {v(x)}"); A(f"v_permlane16_swap_b32 {v(x)}, v6"); A(f"v_add_f32 {v(x)}, {v(x)}, v6")
        A(f"v_mov_b32 v6, {v(x)}"); A(f"v_permlane32_swap_b32 {v(x)}, v6"); A(f"v_add_f32 {v(x)}, {v(x)}, v6")
    LDS_CSR = 0
    A(f"s_lshl_b32 s62, {s(S_WAVE)}, 8"); A(f"s_add_u32 s62, s62, {LDS_CSR}")
    A("v_and_b32 v8, 7, v1"); A("v_lshlrev_b32 v8, 5, v8"); A("v_add_u32 v8, s62, v8")
    A("ds_write_b128 v8, v[244:247]"); A("ds_write_b128 v8, v[248:251] offset:16")
    A("s_waitcnt lgkmcnt(0)"); A("s_barrier")
    A(f"v_lshlrev_b32 v8, 2, v1")
    for w in range(4): A(f"ds_read_b32 {v(96+w)}, v8 offset:{LDS_CSR + 256*w}")
    A("s_waitcnt lgkmcnt(0)")
    A("v_add_f32 v96, v96, v97"); A("v_add_f32 v98, v98, v99"); A("v_add_f32 v96, v96, v98")
    A(f"v_mov_b32 v97, {s(S_NONCE)}")
    srd(A, 44, P_WS, F*8, WS_CS)
    A("s_lshl_b32 s62, s64, 9")
    A("v_lshlrev_b32 v8, 3, v1"); A("v_add_u32 v8, s62, v8")
    A.vm("stst", "buffer_store_dwordx2 v[96:97], v8, s[44:47], 0 offen sc1")
    conv_ids(A)
    conv_h_loads(A)
    f2_issue(A)
    A("s_waitcnt vmcnt(0)")
    flag_check(A, 62, 61, "f2s")
    u_loads(A)
    A("s_movk_i32 s75, 2000")
    A("s_waitcnt vmcnt(0)")
    A.label("L_conv")
    A.vmlist = ["U", "U"] + join_list
    stamp(A, 5)
    items, build = hc_build_items(A)
    for it in items: emit(A, it)
    A("v_cmp_gt_u32 vcc, 2, v4")
    A("s_and_saveexec_b64 s[62:63], vcc")
    A("s_cbranch_execz L_conv_skip3")
    n0 = len(items); build(212, 216, 4096)
    for it in items[n0:]: emit(A, it)
    A.label("L_conv_skip3")
    A("s_mov_b64 exec, s[62:63]")
    A("v_mov_b32 v36, 0"); A("v_mov_b32 v37, 0"); A("v_mov_b32 v38, 0"); A("v_mov_b32 v39, 0")
    A("s_sub_u32 s60, s68, 512")
    A("v_and_b32 v34, 31, v1"); A("v_lshlrev_b32 v34, 4, v34"); A("v_add_u32 v34, s60, v34")
    A("ds_write_b128 v34, v[36:39]")
    A("s_lshl_b32 s60, s72, 11"); A("s_add_u32 s60, s60, s68")
    A("v_lshlrev_b32 v3, 4, v1"); A("v_add_u32 v3, s60, v3")
    A.wait_vm("U")
    A("ds_write_b128 v3, v[220:223]"); A("ds_write_b128 v3, v[224:227] offset:1024")
    A("v_and_b32 v4, 15, v1"); A("v_add_u32 v4, 1, v4"); A("v_lshrrev_b32 v5, 4, v1")
    A("v_and_b32 v6, 3, v4"); A(f"v_mul_u32_u24 v6, {CONV_COPY}, v6")
    A("v_and_b32 v7, 0x1c, v4"); A("v_lshl_add_u32 v7, v5, 3, v7"); A("v_lshl_add_u32 v6, v7, 1, v6")
    A("s_lshl_b32 s60, s72, 8"); A("s_add_u32 s60, s60, s69"); A("v_add_u32 v52, s60, v6")
    A("v_and_b32 v4, 15, v1"); A("v_lshlrev_b32 v4, 5, v4"); A("v_lshlrev_b32 v5, 4, v5"); A("v_sub_u32 v4, v4, v5")
    A("s_lshl_b32 s60, s72, 8"); A("s_sub_u32 s60, s68, s60"); A("s_add_u32 s60, s60, 16"); A("s_sub_u32 s60, s60, 256")
    A("v_add_u32 v53, s60, v4")
    CA = 64
    for i in range(32): A(f"v_mov_b32 {v(CA+i)}, 0")
    A("s_and_b32 s60, s2, 7"); A("s_lshr_b32 s61, s2, 3")
    A("s_lshl_b32 s64, s60, 2"); A("s_and_b32 s62, s61, 3"); A("s_add_u32 s64, s64, s62")
    A("s_lshr_b32 s65, s61, 2")
    A(f"s_lshr_b32 s66, {s(S_WAVE)}, 1"); A(f"s_and_b32 s67, {s(S_WAVE)}, 1")
    srd(A, 36, P_W2, F*D*2); srd(A, 40, P_Q, S*D*2)
    A("v_lshrrev_b32 v8, 3, v1"); A("v_and_b32 v10, 7, v1")
    A("v_bfe_u32 v9, v1, 4, 1"); A("v_lshlrev_b32 v9, 2, v9"); A("v_xor_b32 v11, v10, v9"); A("v_lshlrev_b32 v11, 4, v11")
    A("v_lshl_add_u32 v24, v8, 10, v11")
    A(f"s_mul_i32 s60, {s(S_WAVE)}, {28*16*1024}"); A("s_lshl_b32 s61, s65, 7"); A("s_add_u32 s60, s60, s61")
    A("v_add_u32 v24, s60, v24"); A("v_add_u32 v25, 8192, v24")
    A(f"s_mul_i32 s70, {s(S_WAVE)}, {DW*2048}"); A(f"s_add_u32 s70, s70, {G2_RING}")
    A("s_lshr_b32 s60, s2, 3"); A("s_and_b32 s60, s60, 3"); A("s_mul_i32 s60, s60, 7")
    A("s_mul_i32 s61, s65, 7"); A("s_lshr_b32 s61, s61, 1"); A("s_add_u32 s3, s60, s61")
    A("s_cmp_ge_u32 s3, 28"); A("s_cselect_b32 s60, 28, 0"); A("s_sub_u32 s3, s3, s60")
    if not OPT["rot"]: A("s_mov_b32 s3, 0")
    A("s_lshl_b32 s56, s3, 14")
    def w2_dma(ks, half):
        slot = ks % DW
        A(f"s_add_u32 m0, s70, {slot*2048 + 1024*half}")
        A.vm(f"W{ks}", f"buffer_load_dwordx4 {v(24+half)}, s[36:39], s56 offen lds")
        if half == 1:
            A("s_add_u32 s56, s56, 16384")
            if OPT["rot"]: A(f"s_cmp_eq_u32 s56, {28*16384}"); A("s_cselect_b32 s56, 0, s56")
    A("v_lshrrev_b32 v8, 2, v1"); A("v_and_b32 v9, 3, v1"); A("v_bfe_u32 v10, v1, 4, 2"); A("v_xor_b32 v9, v9, v10")
    A("v_lshlrev_b32 v9, 4, v9"); A("v_lshl_add_u32 v9, v8, 10, v9")
    A("s_lshl_b32 s60, s64, 16"); A("s_lshl_b32 s61, s67, 15"); A("s_add_u32 s60, s60, s61")
    A("s_lshl_b32 s61, s65, 7"); A("s_add_u32 s60, s60, s61"); A("s_lshl_b32 s61, s66, 6"); A("s_add_u32 s60, s60, s61")
    A("v_add_u32 v26, s60, v9"); A("v_add_u32 v27, 16384, v26")
    A(f"s_lshl_b32 s57, {s(S_WAVE)}, 11")
    def x_dma(u):
        A(f"s_add_u32 m0, s57, {G2_XT + 1024*u}"); A.vm("xt", f"buffer_load_dwordx4 {v(26+u)}, s[40:43], 0 offen lds")
    A("s_waitcnt lgkmcnt(0)")
    A("s_barrier")
    stamp(A, 6); dstamp(A, "cm0")
    FR = [96, 160]
    def loads(i, setb):
        L = []
        for a_ in range(8):
            off = 512*a_ + 64*i
            L.append(f"ds_read_b64 {v(setb+4*a_,2)}, v52 offset:{off}")
            L.append(f"ds_read_b64 {v(setb+4*a_+2,2)}, v52 offset:{off+8}")
        for g in range(8):
            L.append(f"ds_read_b128 {v(setb+32+4*g,4)}, v53 offset:{512*g - 64*i + 256}")
        return L
    for l in loads(0, FR[0]): A(l)
    dm = [(lambda ks=ks, hf=hf: w2_dma(ks, hf)) for ks in range(DW) for hf in range(2)]
    A("s_lshr_b32 s60, s64, 1"); A("s_lshl_b32 s60, s60, 4"); A(f"s_add_u32 s60, s60, {F3}"); A("s_lshl_b32 s60, s60, 7")
    A("v_cmp_gt_u32 vcc, 14, v1"); A("v_cndmask_b32 v28, 0, v1, vcc"); A("v_lshlrev_b32 v28, 7, v28"); A("v_add_u32 v28, s60, v28")
    for i in range(4):
        cur = FR[i & 1]; nxt = FR[(i+1) & 1]
        nl = loads(i+1, nxt) if i < 3 else []
        A("s_waitcnt lgkmcnt(0)")
        dstamp(A, f"cg{i}")
        if i == 2:
            A.wait_vm("Hst"); A("s_barrier")
            dstamp(A, "hpub")
            A("s_lshl_b32 s61, s75, 7"); flag_set(A, 8)
        if i == 3:
            A("s_barrier")
            x_dma(0); x_dma(1)
        mf = [f"v_mfma_f32_16x16x32_bf16 {v(CA+4*(a_+g),4)}, {v(cur+4*a_,4)}, {v(cur+32+4*g,4)}, {v(CA+4*(a_+g),4)}" for a_ in range(8) for g in range(8-a_)]
        for n_, m_ in enumerate(mf):
            A(m_)
            if nl and n_ < 30: emit(A, nl.pop(0))
            if n_ % 5 == 4 and dm: emit(A, dm.pop(0))
            if i == 3 and n_ == 24: flag_issue(A, "F3", 29, 28)
        for x in nl: emit(A, x)
    for x in dm: emit(A, x)
    stamp(A, 7); dstamp(A, "cm1")
    HS = 128; WF = [32, 40]; GA = 64; E = 240
    srd(A, 40, P_WS, H_BYTES, WS_H)
    A("s_lshl_b32 s60, s64, 1"); A("s_mul_i32 s60, s60, 112"); A(f"s_mul_i32 s61, {s(S_WAVE)}, 28"); A("s_add_u32 s60, s60, s61"); A("s_lshl_b32 s60, s60, 10")
    A("v_lshlrev_b32 v30, 4, v1"); A("v_add_u32 v30, s60, v30"); A(f"v_add_u32 v31, {112*1024}, v30")
    A("s_lshl_b32 s58, s3, 10")
    def h_load(ks, tt):
        slot = ks % DH
        A.vm(f"H{ks}", f"buffer_load_dwordx4 {v(HS+8*slot+4*tt,4)}, {v(30+tt)}, s[40:43], s58 offen sc1")
        if tt == 1:
            A("s_add_u32 s58, s58, 1024")
            if OPT["rot"]: A(f"s_cmp_eq_u32 s58, {28*1024}"); A("s_cselect_b32 s58, 0, s58")
    srd(A, 48, P_WS, S*8, WS_STAT); srd(A, 52, P_B2, D*2)
    A("v_lshrrev_b32 v3, 5, v1")
    A("s_lshl_b32 s60, s64, 6"); A("s_lshl_b32 s61, s67, 5"); A("s_add_u32 s60, s60, s61")
    A("v_and_b32 v54, 31, v1"); A("v_add_u32 v54, s60, v54"); A("v_lshlrev_b32 v54, 3, v54")
    A.vm("sb", "buffer_load_dwordx2 v[16:17], v54, s[48:51], 0 offen sc1")
    A("s_lshl_b32 s60, s65, 7"); A("s_lshl_b32 s61, s66, 6"); A("s_add_u32 s60, s60, s61")
    A("v_lshlrev_b32 v55, 3, v3"); A("v_add_u32 v55, s60, v55")
    for jj in range(4): A.vm("sb", f"buffer_load_dwordx2 {v(240+2*jj,2)}, v55, s[52:55], 0 offen offset:{16*jj}")
    A.wait_vm("F3")
    flag_check(A, 29, 28, "f3")
    stamp(A, 8); dstamp(A, "g2s")
    hq = [(lambda ks=ks, tt=tt: h_load(ks, tt)) for ks in range(DH) for tt in range(2)]
    for _ in range(4): hq.pop(0)()
    A(f"s_lshl_b32 s60, {s(S_WAVE)}, 12"); A(f"s_add_u32 s60, s60, {LDS_RED}")
    A("v_lshlrev_b32 v4, 4, v1"); A("v_add_u32 v5, s60, v4")
    A(f"s_xor_b32 s61, {s(S_WAVE)}, 1"); A("s_lshl_b32 s61, s61, 12"); A(f"s_add_u32 s61, s61, {LDS_RED}"); A("v_add_u32 v6, s61, v4")
    A("s_cmp_eq_u32 s72, 0"); A("s_cbranch_scc0 L_conv_h1")
    for j in range(4): A(f"ds_write_b128 v5, {v(CA+16+4*j,4)} offset:{1024*j}")
    A("s_branch L_conv_hj")
    A.label("L_conv_h1")
    for j in range(4): A(f"ds_write_b128 v5, {v(CA+4*j,4)} offset:{1024*j}")
    for j in range(16): A(f"v_mov_b32 {v(CA+j)}, {v(CA+16+j)}")
    A.label("L_conv_hj")
    A.bg = hq; A.bg_every = OPT["bgevery"]
    A("s_waitcnt lgkmcnt(0)"); A("s_barrier")
    for j in range(4): A(f"ds_read_b128 {v(96+4*j,4)}, v6 offset:{1024*j}")
    A("v_and_b32 v7, 15, v1"); A("v_lshlrev_b32 v7, 5, v7"); A("v_lshrrev_b32 v8, 5, v1"); A("v_lshl_add_u32 v7, v8, 4, v7")
    A("v_bfe_u32 v8, v1, 4, 1"); A("v_lshlrev_b32 v8, 3, v8"); A("v_sub_u32 v7, v7, v8")
    A("s_lshl_b32 s60, s72, 11"); A("s_add_u32 s60, s60, s68"); A("s_add_u32 s60, s60, 8"); A("v_add_u32 v7, s60, v7")
    for j in range(4): A(f"ds_read_b64 {v(112+2*j,2)}, v7 offset:{512*j}")
    A("v_lshlrev_b32 v60, 16, v60")
    A("s_waitcnt lgkmcnt(0)")
    for j in range(4):
        for i in range(4): A(f"v_add_f32 {v(CA+4*j+i)}, {v(CA+4*j+i)}, {v(96+4*j+i)}")
        A(f"v_and_b32 v9, 0xffff0000, {v(112+2*j+1)}");  A(f"v_fmac_f32 {v(CA+4*j+0)}, v9, v60")
        A(f"v_lshlrev_b32 v9, 16, {v(112+2*j+1)}");      A(f"v_fmac_f32 {v(CA+4*j+1)}, v9, v60")
        A(f"v_and_b32 v9, 0xffff0000, {v(112+2*j)}");    A(f"v_fmac_f32 {v(CA+4*j+2)}, v9, v60")
        A(f"v_lshlrev_b32 v9, 16, {v(112+2*j)}");        A(f"v_fmac_f32 {v(CA+4*j+3)}, v9, v60")
        A(f"v_cvt_pk_bf16_f32 {v(120+2*j)}, {v(CA+4*j)}, {v(CA+4*j+1)}")
        A(f"v_cvt_pk_bf16_f32 {v(121+2*j)}, {v(CA+4*j+2)}, {v(CA+4*j+3)}")
    A(f"s_lshl_b32 s60, {s(S_WAVE)}, 11"); A(f"s_add_u32 s60, s60, {LDS_YO}")
    A("v_and_b32 v7, 15, v1"); A("v_lshlrev_b32 v7, 5, v7"); A("v_lshrrev_b32 v8, 4, v1"); A("v_lshl_add_u32 v7, v8, 3, v7"); A("v_add_u32 v7, s60, v7")
    for j in range(4): A(f"ds_write_b64 v7, {v(120+2*j,2)} offset:{512*j}")
    A("v_add_u32 v8, s60, v4")
    A(f"s_add_u32 s52, {s(P_WS)}, {WS_YT}"); A(f"s_addc_u32 s53, {s(P_WS+1)}, 0")
    A("s_add_u32 s52, s52, s74"); A("s_addc_u32 s53, s53, 0"); A("s_mov_b32 s54, 4096"); A("s_mov_b32 s55, 0x00020000")
    A("s_waitcnt lgkmcnt(0)")
    A("ds_read_b128 v[96:99], v8"); A("ds_read_b128 v[100:103], v8 offset:1024")
    A("s_lshl_b32 s60, s72, 11"); A("v_add_u32 v9, s60, v4")
    A("s_waitcnt lgkmcnt(1)")
    A.vm("yst", "buffer_store_dwordx4 v[96:99], v9, s[52:55], 0 offen sc1")
    A("s_waitcnt lgkmcnt(0)")
    A.vm("yst", "buffer_store_dwordx4 v[100:103], v9, s[52:55], 0 offen offset:1024 sc1")
    srd(A, 44, P_WS, S*D*2, WS_YT)
    A.wait_vm("sb")
    for jj in range(8): A(f"v_mov_b32 {v(8+jj)}, {v(240+jj)}")
    A("v_and_b32 v10+0, 15, v1".replace("v10+0", "v20")); A("v_lshrrev_b32 v21, 2, v20")
    A("v_lshl_add_u32 v18, v3, 2, v21"); A("v_lshlrev_b32 v18, 7, v18")
    A("v_bfe_u32 v19, v1, 4, 1"); A("v_bfe_u32 v20, v1, 1, 1"); A("v_lshl_add_u32 v19, v19, 1, v20"); A("v_lshl_add_u32 v18, v19, 4, v18")
    A("v_and_b32 v19, 1, v1"); A("v_lshl_add_u32 v18, v19, 3, v18")
    A("v_bfe_u32 v19, v1, 3, 1"); A("v_add_u32 v18, s70, v18")
    for cht in range(2):
        A(f"v_xor_b32 v20, {cht}, v19"); A(f"v_lshl_add_u32 {v(48+cht)}, v20, 6, v18")
    for i in range(64): A(f"v_mov_b32 {v(GA+i)}, 0")
    A("v_and_b32 v18, 31, v1"); A("v_bfe_u32 v19, v1, 2, 2")
    A(f"s_add_u32 s60, s57, {G2_XT}")
    A("v_lshlrev_b32 v18, 6, v18"); A("v_lshl_add_u32 v18, v3, 3, v18"); A("v_add_u32 v18, s60, v18")
    for jj in range(4):
        A(f"v_xor_b32 v20, {jj}, v19"); A(f"v_lshl_add_u32 {v(50+jj)}, v20, 4, v18")
    XR = 56
    def e_part1():
        for jj in range(4): A(f"ds_read_b64 {v(XR+2*jj,2)}, {v(50+jj)}")
        spin_until(A, "stat2", lambda: A(f"v_cmp_ne_u32 vcc, {s(S_NONCE)}, v17"), lambda: A("buffer_load_dwordx2 v[16:17], v54, s[48:51], 0 offen sc1"))
        A("v_and_b32 v18, 0xffff0000, v16"); A("v_rcp_f32 v18, v18")
        A("v_lshlrev_b32 v19, 16, v16")
        A("v_mul_f32 v19, v19, v18"); A("v_mul_f32 v17, v18, v18")
        A("s_waitcnt lgkmcnt(0)")
        for jj in range(4):
            for i in range(4):
                r_ = 4*jj + i
                if (i & 1) == 0:
                    A(f"v_lshlrev_b32 v4, 16, {v(XR+2*jj+(i>>1))}"); A(f"v_lshlrev_b32 v5, 16, {v(8+2*jj+(i>>1))}")
                else:
                    A(f"v_and_b32 v4, 0xffff0000, {v(XR+2*jj+(i>>1))}"); A(f"v_and_b32 v5, 0xffff0000, {v(8+2*jj+(i>>1))}")
                A(f"v_add_f32 {v(E+r_)}, v4, v5")
                A(f"v_fma_f32 {v(6+(i&1))}, v4, v18, -v19")
                if i & 1: A(f"v_cvt_pk_bf16_f32 {v(8+2*jj+(i>>1))}, v6, v7")
    e_part1()
    A.bg_flush()
    def wreads(ks, setb):
        slot = ks % DW
        return [f"ds_read_b64_tr_b16 {v(setb+4*cht+2*hf,2)}, {v(48+cht)} offset:{slot*2048+1024*hf}" for cht in range(2) for hf in range(2)]
    for l in wreads(0, WF[0]): A(l)
    for ks in range(28):
        cur = WF[ks & 1]; nxt = WF[(ks+1) & 1]
        tags = [f"H{ks}"] + ([f"W{ks+1}"] if ks+1 < 28 else [])
        tag = min(tags, key=lambda t: A.vm_younger(t))
        A.wait_vm(tag)
        dstamp(A, f"k{ks}")
        if ks+1 < 28:
            for l in wreads(ks+1, nxt): A(l)
            A("s_waitcnt lgkmcnt(4)")
        else:
            A("s_waitcnt lgkmcnt(0)")
        nx = []
        if ks + DW < 28: nx += [lambda ks=ks: w2_dma(ks+DW, 0), lambda ks=ks: w2_dma(ks+DW, 1)]
        if ks + DH < 28: nx += [lambda ks=ks: h_load(ks+DH, 0), lambda ks=ks: h_load(ks+DH, 1)]
        mf = [f"v_mfma_f32_32x32x16_bf16 {v(GA+32*cht+16*tt,16)}, {v(cur+4*cht,4)}, {v(HS+8*(ks%DH)+4*tt,4)}, {v(GA+32*cht+16*tt,16)}" for cht in range(2) for tt in range(2)]
        A(mf[0]); A(mf[1])
        for x in nx[:2] if ks + DW < 28 else []: emit(A, x)
        A(mf[2]); A(mf[3])
        for x in (nx[2:] if ks + DW < 28 else nx): emit(A, x)
        if ks == OPT["f4set"]:
            A.wait_vm("yst")
            A("s_barrier")
            A("s_lshl_b32 s61, s2, 7"); A(f"s_add_u32 s61, s61, {F4*128}"); flag_set(A, 4)
        if ks == OPT['f4chk'] - 4:
            A(f"s_add_u32 s60, s65, {F4}"); A("s_lshl_b32 s60, s60, 7")
            A("v_and_b32 v4, 31, v1"); A("v_lshlrev_b32 v4, 10, v4"); A("v_add_u32 v4, s60, v4")
            flag_issue(A, "F4", 5, 4)
        if ks == OPT['f4chk']:
            A.wait_vm("F4")
            flag_check(A, 5, 4, "f4")
            A("v_lshrrev_b32 v6, 2, v1"); A("v_and_b32 v7, 3, v1")
            A("v_lshlrev_b32 v6, 12, v6"); A("v_lshl_add_u32 v6, v7, 4, v6")
            A("s_lshl_b32 s60, s65, 18"); A("s_lshl_b32 s61, s66, 17"); A("s_add_u32 s60, s60, s61")
            A("s_lshl_b32 s61, s64, 7"); A("s_add_u32 s60, s60, s61"); A("s_lshl_b32 s61, s67, 6"); A("s_add_u32 s60, s60, s61")
            A("v_add_u32 v6, s60, v6"); A("v_add_u32 v7, 65536, v6")
            A.vm("yt", "buffer_load_dwordx4 v[20:23], v6, s[44:47], 0 offen sc1")
            A.vm("yt", "buffer_load_dwordx4 v[56:59], v7, s[44:47], 0 offen sc1")
        if ks == 23:
            A.wait_vm("yt")
            A(f"s_add_u32 s60, s57, {G2_YT}")
            A("v_lshlrev_b32 v6, 4, v1"); A("v_add_u32 v6, s60, v6")
            A("ds_write_b128 v6, v[20:23]"); A("ds_write_b128 v6, v[56:59] offset:1024")
            A("v_and_b32 v7, 15, v1"); A("v_lshrrev_b32 v55, 2, v7"); A("v_lshl_add_u32 v55, v3, 2, v55"); A("v_lshlrev_b32 v55, 6, v55")
            A("v_bfe_u32 v54, v1, 4, 1"); A("v_lshl_add_u32 v55, v54, 5, v55"); A("v_and_b32 v54, 3, v1"); A("v_lshl_add_u32 v55, v54, 3, v55")
            A("v_add_u32 v55, s60, v55")
        if ks == 24:
            for jj in range(4): A(f"ds_read_b64_tr_b16 {v([56,58,60,62][jj],2)}, v55 offset:{512*jj}")
        if ks == 26:
            for jj in range(4):
                yr = [56, 58, 60, 62][jj]
                for i in range(4):
                    r_ = 4*jj + i
                    if (i & 1) == 0:
                        A(f"v_lshlrev_b32 v4, 16, {v(yr+(i>>1))}"); A(f"v_lshlrev_b32 v5, 16, {v(8+2*jj+(i>>1))}")
                    else:
                        A(f"v_and_b32 v4, 0xffff0000, {v(yr+(i>>1))}"); A(f"v_and_b32 v5, 0xffff0000, {v(8+2*jj+(i>>1))}")
                    A(f"v_fmac_f32 {v(E+r_)}, v4, v5")
    stamp(A, 9); dstamp(A, "g2e")
    OWN, P = 128, 144
    A("v_lshlrev_b32 v56, 4, v1"); A(f"v_add_u32 v57, {G2_XCH}, v56")
    A("s_barrier")
    A("s_nop 9")
    lj = newlabel("xj")
    for w in range(4):
        ln = newlabel("xw")
        if w < 3:
            A(f"s_cmp_eq_u32 {s(S_WAVE)}, {w}"); A(f"s_cbranch_scc0 {ln}")
        for k in range(1, 4):
            o = (w + k) & 3
            base = (o*3 + (3-k))*4096
            for jj in range(4):
                A(f"ds_write_b128 v57, {v(GA+16*o+4*jj,4)} offset:{base + 1024*jj}")
        for i in range(16): A(f"v_mov_b32 {v(OWN+i)}, {v(GA+16*w+i)}")
        if w < 3:
            A(f"s_branch {lj}")
            A.label(ln)
    A.label(lj)
    A("s_waitcnt lgkmcnt(0)"); A("s_barrier")
    A(f"s_mul_i32 s60, {s(S_WAVE)}, {3*4096}"); A("v_add_u32 v57, s60, v57")
    for k in range(3):
        for jj in range(4): A(f"ds_read_b128 {v(P+16*k+4*jj,4)}, v57 offset:{4096*k+1024*jj}")
    A("s_waitcnt lgkmcnt(8)")
    for r_ in range(16): A(f"v_add_f32 {v(OWN+r_)}, {v(OWN+r_)}, {v(P+r_)}")
    A("s_waitcnt lgkmcnt(4)")
    for r_ in range(16): A(f"v_add_f32 {v(OWN+r_)}, {v(OWN+r_)}, {v(P+16+r_)}")
    A("s_waitcnt lgkmcnt(0)")
    for jj in range(4):
        for i in range(4):
            r_ = 4*jj + i
            A(f"v_add_f32 {v(OWN+r_)}, {v(OWN+r_)}, {v(P+32+r_)}")
            A(f"v_fma_f32 {v(OWN+r_)}, {v(OWN+r_)}, v17, {v(E+r_)}")
        A(f"v_cvt_pk_bf16_f32 {v(32+2*jj)}, {v(OWN+4*jj)}, {v(OWN+4*jj+1)}")
        A(f"v_cvt_pk_bf16_f32 {v(33+2*jj)}, {v(OWN+4*jj+2)}, {v(OWN+4*jj+3)}")
        A(f"ds_write_b64 {v(50+jj)}, {v(32+2*jj,2)} offset:8192")
    A(f"s_add_u32 s60, s57, {G2_YT}"); A("v_add_u32 v11, s60, v56")
    srd(A, 56, P_OUT, S*D*2)
    A("s_waitcnt lgkmcnt(0)")
    A("ds_read_b128 v[96:99], v11"); A("ds_read_b128 v[100:103], v11 offset:1024")
    fl = " sc1" if OPT["outsc1"] else ""
    A("s_waitcnt lgkmcnt(1)")
    A("buffer_store_dwordx4 v[96:99], v26, s[56:59], 0 offen" + fl)
    A("s_waitcnt lgkmcnt(0)")
    A("buffer_store_dwordx4 v[100:103], v27, s[56:59], 0 offen" + fl)
    if STAMPS:
        A("s_waitcnt vmcnt(0)")
        A("s_memrealtime s[100:101]")
    stamp_flush(A)
    A.label("L_end")
    A("s_endpgm")
    return A

HDR = open("parallel_sum__ssm_conv_h3__dense_activation_squared_relu__prompt.s.ref").read().split("\n")[:14]
def build(path):
    name = KN + "_kernel"
    _lbl[0] = 0
    b, k = kernel_text(name, gen())
    hdr = "\n".join(HDR) + f"\n; @launch grid=(256,1,1) block=(256,1,1) lds={LDS_TOTAL}\n"
    open(path, "w").write(hdr + '.amdgcn_target "amdgcn-amd-amdhsa--gfx950"\n' + b + k)
if __name__ == "__main__":
    if "--stamps" in sys.argv: STAMPS = True; sys.argv.remove("--stamps")
    for a in list(sys.argv):
        if a.startswith("--detail="):
            STAMPS = True; DETAIL = {n: i+1 for i, n in enumerate(a[9:].split(","))}; sys.argv.remove(a)
    for a in list(sys.argv):
        if a.startswith("--opt="):
            k_, v_ = a[6:].split(":"); OPT[k_] = int(v_); sys.argv.remove(a)
    build(sys.argv[1] if len(sys.argv) > 1 else "v3.s")
```

```python
import sys
from asmgen import *
KN = "parallel_sum__ssm_conv_h3__dense_activation_squared_relu__prompt"
S, D, F = 2048, 512, 1792
WS_KVT  = 0
WS_YT   = 2 << 20
WS_H    = 4 << 20
H_BYTES = S*F*2
WS_STAT = 12 << 20
WS_CS   = WS_STAT + 65536
WS_FLAG = 13 << 20
F2, F3, F4 = 256, 512, 768
WS_STAMP = 64 << 20
P_Q, P_K, P_V, P_SK, P_HH, P_DD, P_BX, P_W1, P_B1, P_W2, P_B2, P_OUT, P_DBG, P_WS = [4+2*i for i in range(14)]
S_WAVE, S_NONCE = 32, 33
OOB = 0x7ff00000
STAMPS = False
NSTAMP = 11
OPT = dict(codepf=True, outsc1=False, rot=False, bgevery=5, start=2, f4set=4, f4chk=19, touch=1)
DETAIL = None
def stamp(A, idx):
    if STAMPS and DETAIL is None: A(f"s_memrealtime s[{80+2*idx}:{81+2*idx}]")
    if STAMPS and DETAIL is not None and idx == 0: A("s_memrealtime s[80:81]")
def dstamp(A, name):
    if STAMPS and DETAIL is not None and name in DETAIL: A(f"s_memrealtime s[{80+2*DETAIL[name]}:{81+2*DETAIL[name]}]")
    if STAMPS and DETAIL is not None and ("c" + name) in DETAIL: A(f"s_memtime s[{80+2*DETAIL['c'+name]}:{81+2*DETAIL['c'+name]}]")
def stamp_flush(A):
    if not STAMPS: return
    A("s_waitcnt lgkmcnt(0)")
    A(f"s_add_u32 s60, {s(P_WS)}, {WS_STAMP}"); A(f"s_addc_u32 s61, {s(P_WS+1)}, 0")
    A("s_lshl_b32 s62, s2, 9")
    A("v_lshrrev_b32 v4, 6, v0"); A("v_lshlrev_b32 v4, 7, v4"); A("v_add_u32 v4, s62, v4")
    for i in range(NSTAMP):
        A(f"v_mov_b32 v6, s{80+2*i}"); A(f"v_mov_b32 v7, s{81+2*i}")
        A(f"global_store_dwordx2 v4, v[6:7], s[60:61] offset:{8*i}")

def srd(A, r, base, size, off=0):
    if off:
        A(f"s_add_u32 {s(r)}, {s(base)}, {off}"); A(f"s_addc_u32 {s(r+1)}, {s(base+1)}, 0")
    else:
        A(f"s_mov_b32 {s(r)}, {s(base)}"); A(f"s_mov_b32 {s(r+1)}, {s(base+1)}")
    A(f"s_mov_b32 {s(r+2)}, {size}"); A(f"s_mov_b32 {s(r+3)}, 0x00020000")
def round_bf16(A, x):
    A(f"v_cvt_pk_bf16_f32 {v(x)}, {v(x)}, {v(x)}"); A(f"v_lshlrev_b32 {v(x)}, 16, {v(x)}")
_lbl = [0]
def newlabel(p):
    _lbl[0] += 1; return f"L_{p}_{_lbl[0]}"
def emit(A, it):
    if it is None: return
    if callable(it): it()
    elif isinstance(it, (list, tuple)):
        for x in it: emit(A, x)
    else: A(it)
def weave(A, main, fillers, per):
    f = list(fillers)
    for i, m in enumerate(main):
        emit(A, m)
        n = per[i] if isinstance(per, (list, tuple)) else per
        for _ in range(n):
            if f: emit(A, f.pop(0))
    for x in f: emit(A, x)

SR_FLAG = 76
SPIN_LIMIT = 20000
def flag_issue(A, tag, vdst, vaddr):
    A.vm(tag, f"buffer_load_dword {v(vdst)}, {v(vaddr)}, {s(SR_FLAG,4)}, 0 offen sc1")
def spin_until(A, name, cmp_emit, reload_emit):
    ok = newlabel(name + "_ok"); lp = newlabel(name + "_spin")
    cmp_emit()
    A(f"s_cbranch_vccz {ok}")
    A("s_mov_b32 s60, 0")
    A.label(lp)
    A("s_sleep 1")
    reload_emit()
    A("s_add_u32 s60, s60, 1")
    A("s_waitcnt vmcnt(0)")
    cmp_emit()
    A(f"s_cmp_gt_u32 s60, {SPIN_LIMIT}")
    A(f"s_cbranch_scc1 {ok}")
    A(f"s_cbranch_vccnz {lp}")
    A.label(ok)
def flag_check(A, vdst, vaddr, name):
    spin_until(A, name, lambda: A(f"v_cmp_ne_u32 vcc, {s(S_NONCE)}, {v(vdst)}"),
               lambda: A(f"buffer_load_dword {v(vdst)}, {v(vaddr)}, {s(SR_FLAG,4)}, 0 offen sc1"))
def flag_set(A, vt, wave=0):
    sk = newlabel("fs")
    bg, A.bg = A.bg, []
    A(f"s_cmp_lg_u32 {s(S_WAVE)}, {wave}"); A(f"s_cbranch_scc1 {sk}")
    A(f"v_mov_b32 {v(vt)}, s61"); A(f"v_mov_b32 {v(vt+1)}, {s(S_NONCE)}")
    A("s_mov_b64 exec, 1")
    A(f"buffer_store_dword {v(vt+1)}, {v(vt)}, {s(SR_FLAG,4)}, 0 offen sc1")
    A("s_mov_b64 exec, -1")
    A.label(sk)
    A.bg = bg
def nonce_check(A, vt):
    lp = newlabel("nonce"); ok = newlabel("nonce_ok")
    A(f"v_readfirstlane_b32 {s(S_NONCE)}, {v(vt+1)}")
    A(f"s_cmp_lg_u32 {s(S_NONCE)}, 0")
    A(f"s_cbranch_scc1 {ok}")
    A("s_mov_b32 s60, 0")
    A.label(lp)
    A("s_sleep 1")
    A(f"global_load_dword {v(vt+1)}, {v(vt)}, {s(P_DBG,2)} sc1")
    A("s_add_u32 s60, s60, 1")
    A("s_waitcnt vmcnt(0)")
    A(f"v_readfirstlane_b32 {s(S_NONCE)}, {v(vt+1)}")
    A(f"s_cmp_gt_u32 s60, {SPIN_LIMIT}")
    A(f"s_cbranch_scc1 {ok}")
    A(f"s_cmp_eq_u32 {s(S_NONCE)}, 0")
    A(f"s_cbranch_scc1 {lp}")
    A.label(ok)

G1_SLOT = 32768
KVL = 131072
KVG = 1040
LDS_CSX = KVL
CONV_COPY = 4160
CONV_HC   = 4*CONV_COPY
CONV_U    = 512 + 4096
LDS_HC = 0
LDS_U  = 2*CONV_HC
CONV_END = LDS_U + 2*CONV_U
LDS_RED = 0
LDS_YO = 16384
DW = 14
DH = 14
G2_RING = CONV_END
G2_XT   = 24576
G2_YT   = G2_XT + 8192
G2_XCH  = G2_RING
LDS_TOTAL = G2_RING + 4*DW*2048

def conv_ids(A):
    A(f"s_lshr_b32 s71, {s(S_WAVE)}, 1"); A(f"s_and_b32 s72, {s(S_WAVE)}, 1")
    A("s_and_b32 s60, s2, 7"); A("s_lshl_b32 s73, s60, 6"); A("s_lshr_b32 s60, s2, 3"); A("s_lshl_b32 s60, s60, 1")
    A("s_add_u32 s73, s73, s60"); A("s_add_u32 s73, s73, s71")
    A("s_lshl_b32 s74, s73, 12")
def conv_h_loads(A):
    A(f"s_add_u32 s36, {s(P_HH)}, s74"); A(f"s_addc_u32 s37, {s(P_HH+1)}, 0"); A("s_mov_b32 s38, 4096"); A("s_mov_b32 s39, 0x00020000")
    A("v_and_b32 v4, 127, v0"); A("v_lshlrev_b32 v5, 4, v4")
    A("v_subrev_u32 v6, 32, v5"); A("v_subrev_u32 v7, 16, v5")
    A(f"v_mov_b32 v8, {OOB}")
    A("v_cmp_gt_u32 vcc, 2, v4"); A("v_cndmask_b32 v9, v6, v8, vcc")
    A("v_cmp_gt_u32 vcc, 1, v4"); A("v_cndmask_b32 v10, v7, v8, vcc")
    A.vm("h", "buffer_load_dwordx4 v[196:199], v9, s[36:39], 0 offen")
    A.vm("h", "buffer_load_dwordx4 v[200:203], v10, s[36:39], 0 offen")
    A("v_add_u32 v6, 2048, v6"); A("v_add_u32 v7, 2048, v7")
    A.vm("h", "buffer_load_dwordx4 v[204:207], v6, s[36:39], 0 offen")
    A.vm("h", "buffer_load_dwordx4 v[208:211], v7, s[36:39], 0 offen")
    A("v_add_u32 v6, 2048, v6"); A("v_add_u32 v7, 2048, v7")
    A("buffer_load_dwordx4 v[212:215], v6, s[36:39], 0 offen")
    A("buffer_load_dwordx4 v[216:219], v7, s[36:39], 0 offen")
    A(f"s_mov_b32 s36, {s(P_DD)}"); A(f"s_mov_b32 s37, {s(P_DD+1)}"); A(f"s_mov_b32 s38, {D*2}")
    A("s_lshl_b32 s60, s73, 1"); A("v_mov_b32 v4, s60")
    A.vm("h", "buffer_load_ushort v60, v4, s[36:39], 0 offen")
def f2_issue(A):
    A("s_and_b32 s60, s2, 7"); A(f"s_add_u32 s60, s60, {F2}"); A("s_lshl_b32 s60, s60, 7")
    A("v_and_b32 v61, 31, v1"); A("v_lshlrev_b32 v61, 10, v61"); A("v_add_u32 v61, s60, v61")
    flag_issue(A, "F2", 62, 61)
def u_loads(A):
    A(f"s_add_u32 s36, {s(P_WS)}, s74"); A(f"s_addc_u32 s37, {s(P_WS+1)}, 0"); A("s_mov_b32 s38, 4096"); A("s_mov_b32 s39, 0x00020000")
    A("s_lshl_b32 s60, s72, 11"); A("v_lshlrev_b32 v4, 4, v1"); A("v_add_u32 v4, s60, v4")
    A.vm("U", "buffer_load_dwordx4 v[220:223], v4, s[36:39], 0 offen sc1")
    A.vm("U", "buffer_load_dwordx4 v[224:227], v4, s[36:39], 0 offen offset:1024 sc1")

def hc_build_items(A):
    L = []
    L.append(f"s_mul_i32 s68, s71, {CONV_U}"); L.append(f"s_add_u32 s68, s68, {LDS_U + 512}")
    L.append(f"s_mul_i32 s69, s71, {CONV_HC}")
    L.append("v_and_b32 v4, 127, v0"); L.append("v_lshlrev_b32 v5, 4, v4"); L.append("v_add_u32 v35, s69, v5")
    def build(P, W, off):
        L.append(f"ds_write_b128 v35, {v(P,4)} offset:{off}")
        seq = [P, P+1, P+2, P+3, W, W+1]
        for i in range(4): L.append(f"v_alignbit_b32 {v(40+i)}, {v(seq[i+1])}, {v(seq[i])}, 16")
        L.append(f"ds_write_b128 v35, v[40:43] offset:{off + CONV_COPY}")
        for i in range(4): L.append(f"v_mov_b32 {v(44+i)}, {v(seq[i+1])}")
        L.append(f"ds_write_b128 v35, v[44:47] offset:{off + 2*CONV_COPY}")
        for i in range(4): L.append(f"v_alignbit_b32 {v(48+i)}, {v(seq[i+2])}, {v(seq[i+1])}, 16")
        L.append(f"ds_write_b128 v35, v[48:51] offset:{off + 3*CONV_COPY}")
    build(196, 200, 0); build(204, 208, 2048)
    return L, build

def gen():
    A = Asm()
    A("s_cmp_ge_u32 s2, 256")
    A("s_cbranch_scc1 L_end")
    stamp(A, 0)
    A("s_load_dwordx16 s[4:19], s[0:1], 0")
    A("s_load_dwordx8 s[20:27], s[0:1], 64")
    A("s_load_dwordx4 s[28:31], s[0:1], 96")
    A("s_memrealtime s[34:35]")
    A("v_and_b32 v1, 63, v0")
    A("v_lshrrev_b32 v2, 6, v0")
    if OPT["codepf"]:
        A("s_getpc_b64 s[62:63]")
        A.label("L_pc")
    A(f"v_readfirstlane_b32 {s(S_WAVE)}, v2")
    A("s_lshr_b32 s60, s2, 3"); A("s_and_b32 s61, s2, 7")
    A("v_lshrrev_b32 v8, 3, v1"); A("v_and_b32 v10, 7, v1")
    A("v_lshlrev_b32 v12, 10, v8"); A("v_lshl_add_u32 v12, v10, 4, v12")
    A("s_lshl_b32 s64, s60, 16"); A("s_lshl_b32 s65, s61, 7"); A("s_add_u32 s64, s64, s65")
    A(f"s_lshl_b32 s65, {s(S_WAVE)}, 13"); A("s_add_u32 s65, s65, s64")
    A("v_add_u32 v13, s65, v12")
    A("v_add_u32 v14, 32768, v13")
    A("s_sub_u32 s65, s64, 8192"); A("s_cmp_eq_u32 s60, 0"); A(f"s_cselect_b32 s65, {OOB}, s65")
    A("v_add_u32 v15, s65, v12")
    if OPT["codepf"]:
        A("s_lshl_b32 s66, s60, 10"); A("v_lshl_add_u32 v16, v1, 4, s66")
        A("v_mov_b32 v17, s63"); A("v_add_co_u32 v16, vcc, s62, v16"); A("v_addc_co_u32 v17, vcc, 0, v17, vcc")
    A("s_waitcnt lgkmcnt(0)")
    srd(A, 36, P_K, S*D*2); srd(A, 40, P_V, S*D*2)
    A(f"s_mul_i32 s66, {s(S_WAVE)}, {KVG}"); A(f"s_add_u32 s66, s66, {KVL}")
    A(f"s_mov_b32 m0, {KVL}");                   A.vm("kv", "buffer_load_dwordx4 v15, s[36:39], 0 offen lds")
    A(f"s_add_u32 m0, s66, {KVG}");              A.vm("kv", "buffer_load_dwordx4 v13, s[36:39], 0 offen lds")
    A(f"s_add_u32 m0, s66, {5*KVG}");            A.vm("kv", "buffer_load_dwordx4 v14, s[36:39], 0 offen lds")
    A(f"s_add_u32 m0, s66, {9*KVG}");            A.vm("kv", "buffer_load_dwordx4 v13, s[40:43], 0 offen lds")
    A(f"s_add_u32 m0, s66, {13*KVG}");           A.vm("kv", "buffer_load_dwordx4 v14, s[40:43], 0 offen lds")
    srd(A, 44, P_SK, D*4*2)
    A("v_lshl_add_u32 v13, v2, 3, v8")
    A("s_lshl_b32 s65, s61, 9"); A("v_lshlrev_b32 v14, 4, v13"); A("v_add_u32 v14, s65, v14")
    A.vm("kv", "buffer_load_dwordx4 v[40:43], v14, s[44:47], 0 offen")
    if OPT["touch"]:
        A("s_lshl_b32 s65, s2, 7"); A(f"s_and_b32 s66, {s(S_WAVE)}, 1"); A("s_lshl_b32 s66, s66, 6"); A("s_add_u32 s65, s65, s66")
        A("v_add_u32 v18, s65, v1"); A("v_lshlrev_b32 v18, 6, v18")
        A(f"s_cmp_lt_u32 {s(S_WAVE)}, 2")
        A(f"s_cselect_b32 s44, {s(P_W2)}, {s(P_HH)}"); A(f"s_cselect_b32 s45, {s(P_W2+1)}, {s(P_HH+1)}")
        A(f"s_mov_b32 s46, {D*S*2}"); A(f"s_cselect_b32 s46, {F*D*2}, s46")
        A("buffer_load_dword v19, v18, s[44:47], 0 offen")
    A(f"s_cmp_lg_u32 {s(S_WAVE)}, 0"); A("s_cbranch_scc1 L_now0")
    if OPT["codepf"]:
        A("s_cmp_ge_u32 s60, (L_end-L_pc)>>10"); A("s_cbranch_scc1 L_nopf")
        A("global_load_dwordx4 v[20:23], v[16:17], off")
        A.label("L_nopf")
    A("s_cmp_lg_u32 s2, 0"); A("s_cbranch_scc1 L_now0")
    A("s_or_b32 s34, s34, 1"); A("v_mov_b32 v3, 0"); A("v_mov_b32 v4, s34")
    A("s_mov_b64 exec, 1")
    A(f"global_store_dword v3, v4, {s(P_DBG,2)} sc1")
    A("s_mov_b64 exec, -1")
    A.label("L_now0")
    srd(A, SR_FLAG, P_WS, 1024*128, WS_FLAG)
    base_vm = list(A.vmlist)
    KR, VR = 20, 32
    def kv_compute(fillers):
        A("s_barrier")
        A("v_mov_b32 v54, 0")
        A.vm("nonce", f"global_load_dword v55, v54, {s(P_DBG,2)} sc1")
        stamp(A, 1)
        A("v_and_b32 v12, 7, v1")
        A(f"v_mul_u32_u24 v14, {KVG}, v12"); A("v_lshl_add_u32 v14, v13, 2, v14"); A(f"v_add_u32 v14, {KVL}, v14")
        for j in range(3): A(f"ds_read_b32 {v(KR+j)}, v14 offset:{(5+j)*128}")
        for j in range(8): A(f"ds_read_b32 {v(KR+3+j)}, v14 offset:{KVG + 128*j}")
        for j in range(8): A(f"ds_read_b32 {v(VR+j)}, v14 offset:{9*KVG + 128*j}")
        SK, KF, U = 56, 196, 220
        L = []
        for c in range(2):
            for h in range(2):
                L.append(f"v_lshlrev_b32 {v(SK+4*c+2*h)}, 16, {v(40+2*c+h)}")
                L.append(f"v_and_b32 {v(SK+4*c+2*h+1)}, 0xffff0000, {v(40+2*c+h)}")
        L.append("s_waitcnt lgkmcnt(8)")
        for j in range(11):
            L.append(f"v_lshlrev_b32 {v(KF+j)}, 16, {v(KR+j)}"); L.append(f"v_and_b32 {v(KF+11+j)}, 0xffff0000, {v(KR+j)}")
        for c in range(2):
            for t in range(8):
                kk = KF + 11*c
                L.append(f"v_mul_f32 {v(U+8*c+t)}, {v(kk+t+3)}, {v(SK+4*c+0)}")
                for j in range(1, 4): L.append(f"v_fmac_f32 {v(U+8*c+t)}, {v(kk+t+3-j)}, {v(SK+4*c+j)}")
        L.append("s_waitcnt lgkmcnt(0)")
        for t in range(8):
            L.append(f"v_lshlrev_b32 v5, 16, {v(VR+t)}"); L.append(f"v_and_b32 v6, 0xffff0000, {v(VR+t)}")
            L.append(f"v_mul_f32 {v(U+t)}, {v(U+t)}, v5"); L.append(f"v_mul_f32 {v(U+8+t)}, {v(U+8+t)}, v6")
        for c in range(2):
            for i in range(4):
                L.append(f"v_cvt_pk_bf16_f32 {v(236+4*c+i)}, {v(U+8*c+7-2*i)}, {v(U+8*c+6-2*i)}")
        step = max(1, len(L) // (len(fillers) + 1))
        f = list(fillers)
        for n_, l in enumerate(L):
            A(l)
            if n_ % step == step-1 and f: emit(A, f.pop(0))
        for x in f: emit(A, x)
        srd(A, 36, P_WS, S*D*2, WS_KVT)
        A("s_lshr_b32 s60, s2, 3"); A("s_and_b32 s61, s2, 7")
        A("s_lshl_b32 s62, s61, 18"); A("s_lshl_b32 s63, s60, 7"); A("s_add_u32 s62, s62, s63")
        A("v_lshlrev_b32 v17, 13, v13"); A("v_lshl_add_u32 v17, v12, 4, v17"); A("v_add_u32 v17, s62, v17")
        A.vm("kvst", "buffer_store_dwordx4 v[236:239], v17, s[36:39], 0 offen sc1")
        A("v_add_u32 v17, 4096, v17")
        A.vm("kvst", "buffer_store_dwordx4 v[240:243], v17, s[36:39], 0 offen sc1")
        stamp(A, 2)
    A("s_cmp_ge_u32 s2, 224")
    A("s_cbranch_scc1 L_stats")
    A("s_and_b32 s60, s2, 7"); A("s_lshr_b32 s61, s2, 3")
    A("s_lshr_b32 s64, s60, 1"); A("s_lshl_b32 s64, s64, 2"); A("s_and_b32 s62, s61, 3"); A("s_add_u32 s64, s64, s62")
    A("s_and_b32 s65, s60, 1"); A("s_mul_i32 s65, s65, 7"); A("s_lshr_b32 s62, s61, 2"); A("s_add_u32 s65, s65, s62")
    A(f"s_lshr_b32 s66, {s(S_WAVE)}, 1"); A(f"s_and_b32 s67, {s(S_WAVE)}, 1")
    srd(A, 48, P_Q, S*D*2); srd(A, 52, P_W1, D*F*2)
    A("v_lshrrev_b32 v9, 4, v1")
    A("v_xor_b32 v11, v10, v9"); A("v_lshlrev_b32 v11, 4, v11"); A("v_lshl_add_u32 v11, v8, 10, v11")
    A("s_lshl_b32 s62, s64, 17"); A(f"s_lshl_b32 s63, {s(S_WAVE)}, 15"); A("s_add_u32 s62, s62, s63")
    A("v_add_u32 v44, s62, v11")
    A("v_xor_b32 v45, 64, v44"); A("v_add_u32 v45, 8192, v45")
    A("v_add_u32 v46, 16384, v44"); A("v_add_u32 v47, 16384, v45")
    A("v_and_b32 v11, 15, v1"); A("v_lshlrev_b32 v16, 2, v9"); A("v_xor_b32 v11, v11, v16"); A("v_lshlrev_b32 v11, 4, v11")
    A("v_mul_u32_u24 v16, 3584, v9"); A("v_add_u32 v11, v11, v16")
    A(f"s_mul_i32 s62, {s(S_WAVE)}, {16*3584}"); A("s_lshl_b32 s63, s65, 8"); A("s_add_u32 s62, s62, s63")
    A("v_add_u32 v48, s62, v11")
    for u in range(1, 4): A(f"v_add_u32 {v(48+u)}, {4*3584*u}, v48")
    A(f"s_lshl_b32 s68, {s(S_WAVE)}, 12")
    def g1_dma(st, u):
        slot = st & 3
        if u < 4:
            A(f"s_add_u32 m0, s68, {slot*G1_SLOT + 1024*u}")
            A.vm(f"D{st}", f"buffer_load_dwordx4 {v(44+u)}, s[48:51], s69 offen lds")
        else:
            A(f"s_add_u32 m0, s68, {slot*G1_SLOT + 16384 + 1024*(u-4)}")
            A.vm(f"D{st}", f"buffer_load_dwordx4 {v(48+u-4)}, s[52:55], s70 offen lds")
        if u == 7:
            if OPT["rot"]:
                A("s_add_u32 s34, s34, 1"); A("s_and_b32 s34, s34, 7")
                A("s_lshl_b32 s69, s34, 7"); A(f"s_mul_i32 s70, s34, {64*3584}")
            else:
                A("s_add_u32 s69, s69, 128"); A(f"s_add_u32 s70, s70, {64*3584}")
    A("s_and_b32 s62, s61, 3"); A("s_lshl_b32 s62, s62, 1"); A("s_lshr_b32 s63, s61, 2"); A("s_add_u32 s34, s62, s63"); A("s_and_b32 s34, s34, 7")
    if not OPT["rot"]: A("s_mov_b32 s34, 0")
    A("s_lshl_b32 s69, s34, 7"); A(f"s_mul_i32 s70, s34, {64*3584}")
    dstamp(A, "g1issue0")
    for u in range(8): g1_dma(0, u)
    if OPT["start"] == 0:
        for u in range(8): g1_dma(1, u)
    dstamp(A, "issued")
    A("v_lshrrev_b32 v8, 5, v1")
    A("v_and_b32 v10, 31, v1"); A("v_bfe_u32 v11, v1, 1, 3")
    A("s_lshl_b32 s62, s67, 13")
    A("v_lshlrev_b32 v16, 7, v10"); A("v_add_u32 v16, s62, v16")
    FB = 112
    for ks in range(4):
        A(f"v_add_u32 v17, {2*ks}, v8"); A("v_xor_b32 v17, v17, v11")
        A(f"v_lshl_add_u32 {v(FB+ks)}, v17, 4, v16")
        A(f"v_add_u32 {v(FB+4+ks)}, 0x10000, {v(FB+ks)}")
    A("v_and_b32 v10, 15, v1"); A("v_lshrrev_b32 v11, 2, v10"); A("v_bfe_u32 v16, v1, 4, 1")
    A("v_lshl_add_u32 v17, v8, 3, v11"); A("v_lshlrev_b32 v17, 8, v17")
    A("v_bfe_u32 v18, v1, 1, 1"); A("v_lshl_add_u32 v18, v16, 1, v18"); A("v_lshl_add_u32 v17, v18, 4, v17")
    A("v_and_b32 v18, 1, v1"); A("v_lshl_add_u32 v17, v18, 3, v17"); A("v_add_u32 v17, 16384, v17")
    for ft in range(2):
        A("s_lshl_b32 s62, s66, 1"); A(f"s_add_u32 s62, s62, {ft}")
        A("v_xor_b32 v18, s62, v11")
        A(f"v_lshl_add_u32 {v(FB+8+ft)}, v18, 6, v17")
        A(f"v_add_u32 {v(FB+10+ft)}, 0x10000, {v(FB+8+ft)}")
    ACC = 128
    for i in range(64): A(f"v_mov_b32 {v(ACC+i)}, 0")
    FA = [64, 80]
    def frag_reads(st, ks, setb):
        slot = st & 3; hi = slot >= 2; so = (slot & 1)*G1_SLOT
        L = []
        for ft in range(2):
            ra = FB + (10 if hi else 8) + ft
            L.append(f"ds_read_b64_tr_b16 {v(setb+4*ft,2)}, {v(ra)} offset:{so + 4096*ks}")
            L.append(f"ds_read_b64_tr_b16 {v(setb+4*ft+2,2)}, {v(ra)} offset:{so + 4096*ks + 1024}")
        for tt in range(2):
            rb_ = FB + (4 if hi else 0) + ks
            L.append(f"ds_read_b128 {v(setb+8+4*tt,4)}, {v(rb_)} offset:{so + 4096*tt}")
        return L
    srd(A, 40, P_WS, 65536 + F*8, WS_STAT); srd(A, 56, P_B1, F*2)
    A("v_and_b32 v96, 31, v1")
    A("s_lshl_b32 s62, s64, 7"); A("s_lshl_b32 s63, s67, 6"); A("s_add_u32 s62, s62, s63")
    A("v_add_u32 v97, s62, v96"); A("v_lshlrev_b32 v97, 3, v97")
    A("s_lshl_b32 s62, s65, 7"); A("s_lshl_b32 s63, s66, 6"); A("s_add_u32 s62, s62, s63")
    A("v_add_u32 v98, s62, v96")
    A("v_lshlrev_b32 v99, 3, v98"); A("v_add_u32 v99, 65536, v99")
    A("v_lshlrev_b32 v98, 1, v98")
    conv_ids(A)
    A.wait_vm("kv")
    if OPT["start"] == 0: kv_compute([(lambda st=st, u=u: g1_dma(st, u)) for st in (2, 3) for u in range(8)])
    elif OPT["start"] == 1: kv_compute([(lambda u=u: g1_dma(1, u)) for u in range(8)])
    else: kv_compute([(lambda st=st, u=u: g1_dma(st, u)) for st in (1, 2, 3) for u in range(8)])
    A.wait_vm("D0")
    A("s_barrier")
    stamp(A, 3)
    for l in frag_reads(0, 0, FA[0]): A(l)
    def stat_loads(tr=True):
        L = ["buffer_load_dwordx2 v[100:101], v97, s[40:43], 0 offen sc1",
             "buffer_load_dwordx2 v[102:103], v97, s[40:43], 0 offen offset:256 sc1",
             "buffer_load_dwordx2 v[104:105], v99, s[40:43], 0 offen sc1",
             "buffer_load_dwordx2 v[106:107], v99, s[40:43], 0 offen offset:256 sc1"]
        for l in L:
            if tr: A.vm("aug", l)
            else: A(l)
    for st in range(8):
        for ks in range(4):
            p = 4*st + ks
            cur = FA[p & 1]; nxt = FA[(p+1) & 1]
            extra = []
            if ks == 3 and st < 7:
                dstamp(A, f"preB{st+1}")
                A.wait_vm(f"D{st+1}")
                A("s_barrier")
                dstamp(A, f"B{st+1}")
                if st == 3:
                    nonce_check(A, 54)
                    A("s_lshl_b32 s61, s2, 7"); A(f"s_add_u32 s61, s61, {F2*128}")
                    flag_set(A, 4)
                if st == 4:
                    f2_issue(A)
                if st == 5:
                    extra = [lambda: conv_h_loads(A)]
                if st == 6:
                    flag_check(A, 62, 61, "f2")
                    dstamp(A, "f2ok")
                    u_loads(A)
                    A.vm("aug", "buffer_load_ushort v108, v98, s[56:59], 0 offen")
                    A.vm("aug", "buffer_load_ushort v109, v98, s[56:59], 0 offen offset:64")
                    stat_loads()
            last = (st == 7 and ks == 3)
            r = [] if last else (frag_reads(st, ks+1, nxt) if ks < 3 else frag_reads(st+1, 0, nxt))
            if ks == 3: q, part = st, 0
            else: q, part = st-1, ks+1
            d = [(q+3, 2*part), (q+3, 2*part+1)] if (q >= (0 if OPT["start"] == 1 else 1) and q+3 <= 7) else []
            if st == 0 and ks < 3 and OPT["start"] == 1: d = [(2, u) for u in ((0, 1, 2), (3, 4, 5), (6, 7))[ks]]
            A("s_waitcnt lgkmcnt(0)")
            if last: A("s_barrier")
            mf = [f"v_mfma_f32_32x32x16_bf16 {v(ACC+32*a_+16*tt,16)}, {v(cur+4*a_,4)}, {v(cur+8+4*tt,4)}, {v(ACC+32*a_+16*tt,16)}" for a_ in range(2) for tt in range(2)]
            for m_i, m_ in enumerate(mf):
                A(m_)
                for _ in range(2):
                    if r: A(r.pop(0))
                if (m_i in (1, 3) or (m_i == 2 and len(d) == 2 and st == 0 and ks < 2)) and d: g1_dma(*d.pop(0))
            assert not d
            for x in extra: emit(A, x)
    stamp(A, 4)
    A.wait_vm("aug")
    def st_cmp():
        A(f"v_cmp_ne_u32 vcc, {s(S_NONCE)}, v101"); A("s_mov_b64 s[62:63], vcc")
        A(f"v_cmp_ne_u32 vcc, {s(S_NONCE)}, v103"); A("s_or_b64 s[62:63], vcc, s[62:63]")
        A(f"v_cmp_ne_u32 vcc, {s(S_NONCE)}, v105"); A("s_or_b64 s[62:63], vcc, s[62:63]")
        A(f"v_cmp_ne_u32 vcc, {s(S_NONCE)}, v107"); A("s_or_b64 vcc, vcc, s[62:63]")
    spin_until(A, "stat", st_cmp, lambda: stat_loads(False))
    dstamp(A, "statok")
    AA, BB = 64, 72
    for tt in range(2):
        g = 100 + 2*tt
        A(f"v_and_b32 v4, 0xffff, {v(g)}"); A("v_xor_b32 v4, 0x8000, v4")
        A(f"v_lshl_or_b32 {v(BB+4*tt)}, v4, 16, v4")
        A(f"v_lshrrev_b32 {v(BB+4*tt+1)}, 16, {v(g)}")
        A(f"v_mov_b32 {v(BB+4*tt+2)}, 0"); A(f"v_mov_b32 {v(BB+4*tt+3)}, 0")
    A("v_cmp_gt_u32 vcc, 32, v1")
    for ft in range(2):
        csr = 104 + 2*ft
        A(f"v_cvt_pk_bf16_f32 v4, {v(csr)}, {v(csr)}"); A("v_lshlrev_b32 v4, 16, v4")
        A(f"v_sub_f32 v5, {v(csr)}, v4")
        A(f"v_cvt_pk_bf16_f32 v4, {v(csr)}, v5")
        A(f"v_cndmask_b32 {v(AA+4*ft)}, 0, v4, vcc")
        A(f"v_cndmask_b32 {v(AA+4*ft+1)}, 0, {v(108+ft)}, vcc")
        A(f"v_mov_b32 {v(AA+4*ft+2)}, 0"); A(f"v_mov_b32 {v(AA+4*ft+3)}, 0")
    for ft in range(2):
        for tt in range(2):
            c = ACC+32*ft+16*tt
            A(f"v_mfma_f32_32x32x16_bf16 {v(c,16)}, {v(AA+4*ft,4)}, {v(BB+4*tt,4)}, {v(c,16)}")
    srd(A, 44, P_WS, H_BYTES, WS_H)
    A("s_lshl_b32 s62, s64, 2"); A("s_lshl_b32 s63, s67, 1"); A("s_add_u32 s62, s62, s63"); A("s_mul_i32 s62, s62, 112")
    A("s_lshl_b32 s63, s65, 3"); A("s_add_u32 s62, s62, s63"); A("s_lshl_b32 s63, s66, 2"); A("s_add_u32 s62, s62, s63")
    A("s_lshl_b32 s62, s62, 10")
    A("v_lshlrev_b32 v12, 4, v1"); A("v_add_u32 v12, s62, v12")
    A(f"v_add_u32 v13, {112*1024}, v12")
    A("s_lshl_b32 s75, s64, 4"); A("s_add_u32 s75, s75, s65"); A(f"s_add_u32 s75, s75, {F3}")
    for ft in range(2):
        for tt in range(2):
            c = ACC + 32*ft + 16*tt
            o = 80 + 8*((2*ft+tt) & 1)
            for d_ in range(8):
                A(f"v_max_f32 v16, 0, {v(c+2*d_)}"); A(f"v_max_f32 v17, 0, {v(c+2*d_+1)}")
                A(f"v_pk_mul_f32 {v(c+2*d_,2)}, {v(c+2*d_,2)}, v[16:17]")
                A(f"v_cvt_pk_bf16_f32 {v(o+d_)}, {v(c+2*d_)}, {v(c+2*d_+1)}")
            A.vm("Hst", f"buffer_store_dwordx4 {v(o,4)}, {v(12+tt)}, s[44:47], 0 offen offset:{2048*ft} sc1")
            A.vm("Hst", f"buffer_store_dwordx4 {v(o+4,4)}, {v(12+tt)}, s[44:47], 0 offen offset:{2048*ft+1024} sc1")
    join_n = A.vm_younger("U")
    assert join_n <= 16
    join_list = A.vmlist[len(A.vmlist)-join_n:]
    A("s_branch L_conv")
    A.label("L_stats")
    A.vmlist = list(base_vm)
    A("s_sub_u32 s64, s2, 224")
    srd(A, 48, P_Q, S*D*2); srd(A, 52, P_W1, D*F*2)
    A("v_lshrrev_b32 v9, 4, v1"); A("v_and_b32 v11, 15, v1")
    A("v_lshlrev_b32 v9, 10, v9"); A("v_lshl_add_u32 v9, v11, 4, v9")
    A("s_lshl_b32 s62, s64, 16"); A(f"s_lshl_b32 s63, {s(S_WAVE)}, 14"); A("s_add_u32 s62, s62, s63")
    A("v_add_u32 v44, s62, v9")
    LN = 128
    for g in range(4):
        for i in range(4):
            A.vm(f"ln{g}", f"buffer_load_dwordx4 {v(LN+16*g+4*i,4)}, v44, s[48:51], 0 offen offset:{256*i}")
        if g < 3: A("v_add_u32 v44, 4096, v44")
    A("s_min_u32 s65, s64, 27")
    A("v_lshrrev_b32 v9, 3, v1"); A("v_and_b32 v11, 7, v1")
    A("v_mul_u32_u24 v9, 3584, v9"); A("v_lshl_add_u32 v9, v11, 4, v9")
    A(f"s_mul_i32 s62, {s(S_WAVE)}, {128*3584}"); A("s_lshl_b32 s63, s65, 7"); A("s_add_u32 s62, s62, s63")
    A("v_add_u32 v45, s62, v9")
    CSL = 64
    def cs_load(i):
        A.vm("cs", f"buffer_load_dwordx4 {v(CSL+4*i,4)}, v45, s[52:55], 0 offen")
        if i < 15: A(f"v_add_u32 v45, {8*3584}, v45")
    A.wait_vm("kv")
    kv_compute([])
    for i in range(16): cs_load(i)
    srd(A, 40, P_WS, S*8, WS_STAT)
    A("s_mov_b32 s62, 0x3f803f80")
    for g in range(4):
        A.wait_vm(f"ln{g}")
        A("v_mov_b32 v4, 0"); A("v_mov_b32 v5, 0")
        for i in range(16):
            A(f"v_dot2_f32_bf16 v4, {v(LN+16*g+i)}, s62, v4")
            A(f"v_dot2_f32_bf16 v5, {v(LN+16*g+i)}, {v(LN+16*g+i)}, v5")
        for x in (4, 5):
            A(f"v_add_f32_dpp v6, {v(x)}, {v(x)} quad_perm:[1,0,3,2] row_mask:0xf bank_mask:0xf")
            A(f"v_add_f32_dpp {v(x)}, v6, v6 quad_perm:[2,3,0,1] row_mask:0xf bank_mask:0xf")
            A(f"v_add_f32_dpp v6, {v(x)}, {v(x)} row_half_mirror row_mask:0xf bank_mask:0xf")
            A(f"v_add_f32_dpp {v(x)}, v6, v6 row_mirror row_mask:0xf bank_mask:0xf")
        A("v_mul_f32 v4, 0x3b000000, v4"); A("v_mul_f32 v5, 0x3b000000, v5")
        A("v_fma_f32 v5, -v4, v4, v5"); A("v_max_f32 v5, 0, v5")
        round_bf16(A, 5)
        A("v_add_f32 v5, 0x3727c5ac, v5"); round_bf16(A, 5)
        A("v_sqrt_f32 v5, v5")
        A(f"v_cvt_pk_bf16_f32 {v(228+2*g)}, v4, v5")
    A.wait_vm("nonce")
    nonce_check(A, 54)
    for g in range(4): A(f"v_mov_b32 {v(229+2*g)}, {s(S_NONCE)}")
    A("s_lshl_b32 s62, s64, 6"); A(f"s_lshl_b32 s63, {s(S_WAVE)}, 4"); A("s_add_u32 s62, s62, s63")
    A("v_lshrrev_b32 v8, 4, v1"); A("v_add_u32 v8, s62, v8"); A("v_lshlrev_b32 v8, 3, v8")
    A("v_and_b32 v9, 15, v1"); A("v_cmp_eq_u32 vcc, 0, v9")
    A(f"v_mov_b32 v9, {OOB}"); A("v_cndmask_b32 v8, v9, v8, vcc")
    for g in range(4):
        A.vm("stst", f"buffer_store_dwordx2 {v(228+2*g,2)}, v8, s[40:43], 0 offen offset:{32*g} sc1")
    A.wait_vm("kvst")
    A("s_barrier")
    A("s_lshl_b32 s61, s2, 7"); A(f"s_add_u32 s61, s61, {F2*128}"); flag_set(A, 4)
    A.wait_vm("cs")
    A("s_mov_b32 s62, 0x00003f80"); A("s_mov_b32 s63, 0x3f800000")
    for c in range(8): A(f"v_mov_b32 {v(244+c)}, 0")
    for i in range(16):
        for dw in range(4):
            A(f"v_dot2_f32_bf16 {v(244+2*dw)}, {v(CSL+4*i+dw)}, s62, {v(244+2*dw)}")
            A(f"v_dot2_f32_bf16 {v(244+2*dw+1)}, {v(CSL+4*i+dw)}, s63, {v(244+2*dw+1)}")
    for c in range(8):
        x = 244 + c
        A(f"v_add_f32_dpp {v(x)}, {v(x)}, {v(x)} row_ror:8 row_mask:0xf bank_mask:0xf")
        A(f"v_mov_b32 v6, {v(x)}"); A(f"v_permlane16_swap_b32 {v(x)}, v6"); A(f"v_add_f32 {v(x)}, {v(x)}, v6")
        A(f"v_mov_b32 v6, {v(x)}"); A(f"v_permlane32_swap_b32 {v(x)}, v6"); A(f"v_add_f32 {v(x)}, {v(x)}, v6")
    LDS_CSR = 0
    A(f"s_lshl_b32 s62, {s(S_WAVE)}, 8"); A(f"s_add_u32 s62, s62, {LDS_CSR}")
    A("v_and_b32 v8, 7, v1"); A("v_lshlrev_b32 v8, 5, v8"); A("v_add_u32 v8, s62, v8")
    A("ds_write_b128 v8, v[244:247]"); A("ds_write_b128 v8, v[248:251] offset:16")
    A("s_waitcnt lgkmcnt(0)"); A("s_barrier")
    A(f"v_lshlrev_b32 v8, 2, v1")
    for w in range(4): A(f"ds_read_b32 {v(96+w)}, v8 offset:{LDS_CSR + 256*w}")
    A("s_waitcnt lgkmcnt(0)")
    A("v_add_f32 v96, v96, v97"); A("v_add_f32 v98, v98, v99"); A("v_add_f32 v96, v96, v98")
    A(f"v_mov_b32 v97, {s(S_NONCE)}")
    srd(A, 44, P_WS, F*8, WS_CS)
    A("s_lshl_b32 s62, s64, 9")
    A("v_lshlrev_b32 v8, 3, v1"); A("v_add_u32 v8, s62, v8")
    A.vm("stst", "buffer_store_dwordx2 v[96:97], v8, s[44:47], 0 offen sc1")
    conv_ids(A)
    conv_h_loads(A)
    f2_issue(A)
    A("s_waitcnt vmcnt(0)")
    flag_check(A, 62, 61, "f2s")
    u_loads(A)
    A("s_movk_i32 s75, 2000")
    A("s_waitcnt vmcnt(0)")
    A.label("L_conv")
    A.vmlist = ["U", "U"] + join_list
    stamp(A, 5)
    items, build = hc_build_items(A)
    for it in items: emit(A, it)
    A("v_cmp_gt_u32 vcc, 2, v4")
    A("s_and_saveexec_b64 s[62:63], vcc")
    A("s_cbranch_execz L_conv_skip3")
    n0 = len(items); build(212, 216, 4096)
    for it in items[n0:]: emit(A, it)
    A.label("L_conv_skip3")
    A("s_mov_b64 exec, s[62:63]")
    A("v_mov_b32 v36, 0"); A("v_mov_b32 v37, 0"); A("v_mov_b32 v38, 0"); A("v_mov_b32 v39, 0")
    A("s_sub_u32 s60, s68, 512")
    A("v_and_b32 v34, 31, v1"); A("v_lshlrev_b32 v34, 4, v34"); A("v_add_u32 v34, s60, v34")
    A("ds_write_b128 v34, v[36:39]")
    A("s_lshl_b32 s60, s72, 11"); A("s_add_u32 s60, s60, s68")
    A("v_lshlrev_b32 v3, 4, v1"); A("v_add_u32 v3, s60, v3")
    A.wait_vm("U")
    A("ds_write_b128 v3, v[220:223]"); A("ds_write_b128 v3, v[224:227] offset:1024")
    A("v_and_b32 v4, 15, v1"); A("v_add_u32 v4, 1, v4"); A("v_lshrrev_b32 v5, 4, v1")
    A("v_and_b32 v6, 3, v4"); A(f"v_mul_u32_u24 v6, {CONV_COPY}, v6")
    A("v_and_b32 v7, 0x1c, v4"); A("v_lshl_add_u32 v7, v5, 3, v7"); A("v_lshl_add_u32 v6, v7, 1, v6")
    A("s_lshl_b32 s60, s72, 8"); A("s_add_u32 s60, s60, s69"); A("v_add_u32 v52, s60, v6")
    A("v_and_b32 v4, 15, v1"); A("v_lshlrev_b32 v4, 5, v4"); A("v_lshlrev_b32 v5, 4, v5"); A("v_sub_u32 v4, v4, v5")
    A("s_lshl_b32 s60, s72, 8"); A("s_sub_u32 s60, s68, s60"); A("s_add_u32 s60, s60, 16"); A("s_sub_u32 s60, s60, 256")
    A("v_add_u32 v53, s60, v4")
    CA = 64
    for i in range(32): A(f"v_mov_b32 {v(CA+i)}, 0")
    A("s_and_b32 s60, s2, 7"); A("s_lshr_b32 s61, s2, 3")
    A("s_lshl_b32 s64, s60, 2"); A("s_and_b32 s62, s61, 3"); A("s_add_u32 s64, s64, s62")
    A("s_lshr_b32 s65, s61, 2")
    A(f"s_lshr_b32 s66, {s(S_WAVE)}, 1"); A(f"s_and_b32 s67, {s(S_WAVE)}, 1")
    srd(A, 36, P_W2, F*D*2); srd(A, 40, P_Q, S*D*2)
    A("v_lshrrev_b32 v8, 3, v1"); A("v_and_b32 v10, 7, v1")
    A("v_bfe_u32 v9, v1, 4, 1"); A("v_lshlrev_b32 v9, 2, v9"); A("v_xor_b32 v11, v10, v9"); A("v_lshlrev_b32 v11, 4, v11")
    A("v_lshl_add_u32 v24, v8, 10, v11")
    A(f"s_mul_i32 s60, {s(S_WAVE)}, {28*16*1024}"); A("s_lshl_b32 s61, s65, 7"); A("s_add_u32 s60, s60, s61")
    A("v_add_u32 v24, s60, v24"); A("v_add_u32 v25, 8192, v24")
    A(f"s_mul_i32 s70, {s(S_WAVE)}, {DW*2048}"); A(f"s_add_u32 s70, s70, {G2_RING}")
    A("s_lshr_b32 s60, s2, 3"); A("s_and_b32 s60, s60, 3"); A("s_mul_i32 s60, s60, 7")
    A("s_mul_i32 s61, s65, 7"); A("s_lshr_b32 s61, s61, 1"); A("s_add_u32 s3, s60, s61")
    A("s_cmp_ge_u32 s3, 28"); A("s_cselect_b32 s60, 28, 0"); A("s_sub_u32 s3, s3, s60")
    if not OPT["rot"]: A("s_mov_b32 s3, 0")
    A("s_lshl_b32 s56, s3, 14")
    def w2_dma(ks, half):
        slot = ks % DW
        A(f"s_add_u32 m0, s70, {slot*2048 + 1024*half}")
        A.vm(f"W{ks}", f"buffer_load_dwordx4 {v(24+half)}, s[36:39], s56 offen lds")
        if half == 1:
            A("s_add_u32 s56, s56, 16384")
            if OPT["rot"]: A(f"s_cmp_eq_u32 s56, {28*16384}"); A("s_cselect_b32 s56, 0, s56")
    A("v_lshrrev_b32 v8, 2, v1"); A("v_and_b32 v9, 3, v1"); A("v_bfe_u32 v10, v1, 4, 2"); A("v_xor_b32 v9, v9, v10")
    A("v_lshlrev_b32 v9, 4, v9"); A("v_lshl_add_u32 v9, v8, 10, v9")
    A("s_lshl_b32 s60, s64, 16"); A("s_lshl_b32 s61, s67, 15"); A("s_add_u32 s60, s60, s61")
    A("s_lshl_b32 s61, s65, 7"); A("s_add_u32 s60, s60, s61"); A("s_lshl_b32 s61, s66, 6"); A("s_add_u32 s60, s60, s61")
    A("v_add_u32 v26, s60, v9"); A("v_add_u32 v27, 16384, v26")
    A(f"s_lshl_b32 s57, {s(S_WAVE)}, 11")
    def x_dma(u):
        A(f"s_add_u32 m0, s57, {G2_XT + 1024*u}"); A.vm("xt", f"buffer_load_dwordx4 {v(26+u)}, s[40:43], 0 offen lds")
    A("s_waitcnt lgkmcnt(0)")
    A("s_barrier")
    stamp(A, 6); dstamp(A, "cm0")
    FR = [96, 160]
    def loads(i, setb):
        L = []
        for a_ in range(8):
            off = 512*a_ + 64*i
            L.append(f"ds_read_b64 {v(setb+4*a_,2)}, v52 offset:{off}")
            L.append(f"ds_read_b64 {v(setb+4*a_+2,2)}, v52 offset:{off+8}")
        for g in range(8):
            L.append(f"ds_read_b128 {v(setb+32+4*g,4)}, v53 offset:{512*g - 64*i + 256}")
        return L
    for l in loads(0, FR[0]): A(l)
    dm = [(lambda ks=ks, hf=hf: w2_dma(ks, hf)) for ks in range(DW) for hf in range(2)]
    A("s_lshr_b32 s60, s64, 1"); A("s_lshl_b32 s60, s60, 4"); A(f"s_add_u32 s60, s60, {F3}"); A("s_lshl_b32 s60, s60, 7")
    A("v_cmp_gt_u32 vcc, 14, v1"); A("v_cndmask_b32 v28, 0, v1, vcc"); A("v_lshlrev_b32 v28, 7, v28"); A("v_add_u32 v28, s60, v28")
    for i in range(4):
        cur = FR[i & 1]; nxt = FR[(i+1) & 1]
        nl = loads(i+1, nxt) if i < 3 else []
        A("s_waitcnt lgkmcnt(0)")
        dstamp(A, f"cg{i}")
        if i == 2:
            A.wait_vm("Hst"); A("s_barrier")
            dstamp(A, "hpub")
            A("s_lshl_b32 s61, s75, 7"); flag_set(A, 8)
        if i == 3:
            A("s_barrier")
            x_dma(0); x_dma(1)
        mf = [f"v_mfma_f32_16x16x32_bf16 {v(CA+4*(a_+g),4)}, {v(cur+4*a_,4)}, {v(cur+32+4*g,4)}, {v(CA+4*(a_+g),4)}" for a_ in range(8) for g in range(8-a_)]
        for n_, m_ in enumerate(mf):
            A(m_)
            if nl and n_ < 30: emit(A, nl.pop(0))
            if n_ % 5 == 4 and dm: emit(A, dm.pop(0))
            if i == 3 and n_ == 24: flag_issue(A, "F3", 29, 28)
        for x in nl: emit(A, x)
    for x in dm: emit(A, x)
    stamp(A, 7); dstamp(A, "cm1")
    HS = 128; WF = [32, 40]; GA = 64; E = 240
    srd(A, 40, P_WS, H_BYTES, WS_H)
    A("s_lshl_b32 s60, s64, 1"); A("s_mul_i32 s60, s60, 112"); A(f"s_mul_i32 s61, {s(S_WAVE)}, 28"); A("s_add_u32 s60, s60, s61"); A("s_lshl_b32 s60, s60, 10")
    A("v_lshlrev_b32 v30, 4, v1"); A("v_add_u32 v30, s60, v30"); A(f"v_add_u32 v31, {112*1024}, v30")
    A("s_lshl_b32 s58, s3, 10")
    def h_load(ks, tt):
        slot = ks % DH
        A.vm(f"H{ks}", f"buffer_load_dwordx4 {v(HS+8*slot+4*tt,4)}, {v(30+tt)}, s[40:43], s58 offen sc1")
        if tt == 1:
            A("s_add_u32 s58, s58, 1024")
            if OPT["rot"]: A(f"s_cmp_eq_u32 s58, {28*1024}"); A("s_cselect_b32 s58, 0, s58")
    srd(A, 48, P_WS, S*8, WS_STAT); srd(A, 52, P_B2, D*2)
    A("v_lshrrev_b32 v3, 5, v1")
    A("s_lshl_b32 s60, s64, 6"); A("s_lshl_b32 s61, s67, 5"); A("s_add_u32 s60, s60, s61")
    A("v_and_b32 v54, 31, v1"); A("v_add_u32 v54, s60, v54"); A("v_lshlrev_b32 v54, 3, v54")
    A.vm("sb", "buffer_load_dwordx2 v[16:17], v54, s[48:51], 0 offen sc1")
    A("s_lshl_b32 s60, s65, 7"); A("s_lshl_b32 s61, s66, 6"); A("s_add_u32 s60, s60, s61")
    A("v_lshlrev_b32 v55, 3, v3"); A("v_add_u32 v55, s60, v55")
    for jj in range(4): A.vm("sb", f"buffer_load_dwordx2 {v(240+2*jj,2)}, v55, s[52:55], 0 offen offset:{16*jj}")
    A.wait_vm("F3")
    flag_check(A, 29, 28, "f3")
    stamp(A, 8); dstamp(A, "g2s")
    hq = [(lambda ks=ks, tt=tt: h_load(ks, tt)) for ks in range(DH) for tt in range(2)]
    for _ in range(4): hq.pop(0)()
    A(f"s_lshl_b32 s60, {s(S_WAVE)}, 12"); A(f"s_add_u32 s60, s60, {LDS_RED}")
    A("v_lshlrev_b32 v4, 4, v1"); A("v_add_u32 v5, s60, v4")
    A(f"s_xor_b32 s61, {s(S_WAVE)}, 1"); A("s_lshl_b32 s61, s61, 12"); A(f"s_add_u32 s61, s61, {LDS_RED}"); A("v_add_u32 v6, s61, v4")
    A("s_cmp_eq_u32 s72, 0"); A("s_cbranch_scc0 L_conv_h1")
    for j in range(4): A(f"ds_write_b128 v5, {v(CA+16+4*j,4)} offset:{1024*j}")
    A("s_branch L_conv_hj")
    A.label("L_conv_h1")
    for j in range(4): A(f"ds_write_b128 v5, {v(CA+4*j,4)} offset:{1024*j}")
    for j in range(16): A(f"v_mov_b32 {v(CA+j)}, {v(CA+16+j)}")
    A.label("L_conv_hj")
    A.bg = hq; A.bg_every = OPT["bgevery"]
    A("s_waitcnt lgkmcnt(0)"); A("s_barrier")
    for j in range(4): A(f"ds_read_b128 {v(96+4*j,4)}, v6 offset:{1024*j}")
    A("v_and_b32 v7, 15, v1"); A("v_lshlrev_b32 v7, 5, v7"); A("v_lshrrev_b32 v8, 5, v1"); A("v_lshl_add_u32 v7, v8, 4, v7")
    A("v_bfe_u32 v8, v1, 4, 1"); A("v_lshlrev_b32 v8, 3, v8"); A("v_sub_u32 v7, v7, v8")
    A("s_lshl_b32 s60, s72, 11"); A("s_add_u32 s60, s60, s68"); A("s_add_u32 s60, s60, 8"); A("v_add_u32 v7, s60, v7")
    for j in range(4): A(f"ds_read_b64 {v(112+2*j,2)}, v7 offset:{512*j}")
    A("v_lshlrev_b32 v60, 16, v60")
    A("s_waitcnt lgkmcnt(0)")
    for j in range(4):
        for i in range(4): A(f"v_add_f32 {v(CA+4*j+i)}, {v(CA+4*j+i)}, {v(96+4*j+i)}")
        A(f"v_and_b32 v9, 0xffff0000, {v(112+2*j+1)}");  A(f"v_fmac_f32 {v(CA+4*j+0)}, v9, v60")
        A(f"v_lshlrev_b32 v9, 16, {v(112+2*j+1)}");      A(f"v_fmac_f32 {v(CA+4*j+1)}, v9, v60")
        A(f"v_and_b32 v9, 0xffff0000, {v(112+2*j)}");    A(f"v_fmac_f32 {v(CA+4*j+2)}, v9, v60")
        A(f"v_lshlrev_b32 v9, 16, {v(112+2*j)}");        A(f"v_fmac_f32 {v(CA+4*j+3)}, v9, v60")
        A(f"v_cvt_pk_bf16_f32 {v(120+2*j)}, {v(CA+4*j)}, {v(CA+4*j+1)}")
        A(f"v_cvt_pk_bf16_f32 {v(121+2*j)}, {v(CA+4*j+2)}, {v(CA+4*j+3)}")
    A(f"s_lshl_b32 s60, {s(S_WAVE)}, 11"); A(f"s_add_u32 s60, s60, {LDS_YO}")
    A("v_and_b32 v7, 15, v1"); A("v_lshlrev_b32 v7, 5, v7"); A("v_lshrrev_b32 v8, 4, v1"); A("v_lshl_add_u32 v7, v8, 3, v7"); A("v_add_u32 v7, s60, v7")
    for j in range(4): A(f"ds_write_b64 v7, {v(120+2*j,2)} offset:{512*j}")
    A("v_add_u32 v8, s60, v4")
    A(f"s_add_u32 s52, {s(P_WS)}, {WS_YT}"); A(f"s_addc_u32 s53, {s(P_WS+1)}, 0")
    A("s_add_u32 s52, s52, s74"); A("s_addc_u32 s53, s53, 0"); A("s_mov_b32 s54, 4096"); A("s_mov_b32 s55, 0x00020000")
    A("s_waitcnt lgkmcnt(0)")
    A("ds_read_b128 v[96:99], v8"); A("ds_read_b128 v[100:103], v8 offset:1024")
    A("s_lshl_b32 s60, s72, 11"); A("v_add_u32 v9, s60, v4")
    A("s_waitcnt lgkmcnt(1)")
    A.vm("yst", "buffer_store_dwordx4 v[96:99], v9, s[52:55], 0 offen sc1")
    A("s_waitcnt lgkmcnt(0)")
    A.vm("yst", "buffer_store_dwordx4 v[100:103], v9, s[52:55], 0 offen offset:1024 sc1")
    srd(A, 44, P_WS, S*D*2, WS_YT)
    A.wait_vm("sb")
    for jj in range(8): A(f"v_mov_b32 {v(8+jj)}, {v(240+jj)}")
    A("v_and_b32 v10+0, 15, v1".replace("v10+0", "v20")); A("v_lshrrev_b32 v21, 2, v20")
    A("v_lshl_add_u32 v18, v3, 2, v21"); A("v_lshlrev_b32 v18, 7, v18")
    A("v_bfe_u32 v19, v1, 4, 1"); A("v_bfe_u32 v20, v1, 1, 1"); A("v_lshl_add_u32 v19, v19, 1, v20"); A("v_lshl_add_u32 v18, v19, 4, v18")
    A("v_and_b32 v19, 1, v1"); A("v_lshl_add_u32 v18, v19, 3, v18")
    A("v_bfe_u32 v19, v1, 3, 1"); A("v_add_u32 v18, s70, v18")
    for cht in range(2):
        A(f"v_xor_b32 v20, {cht}, v19"); A(f"v_lshl_add_u32 {v(48+cht)}, v20, 6, v18")
    for i in range(64): A(f"v_mov_b32 {v(GA+i)}, 0")
    A("v_and_b32 v18, 31, v1"); A("v_bfe_u32 v19, v1, 2, 2")
    A(f"s_add_u32 s60, s57, {G2_XT}")
    A("v_lshlrev_b32 v18, 6, v18"); A("v_lshl_add_u32 v18, v3, 3, v18"); A("v_add_u32 v18, s60, v18")
    for jj in range(4):
        A(f"v_xor_b32 v20, {jj}, v19"); A(f"v_lshl_add_u32 {v(50+jj)}, v20, 4, v18")
    XR = 56
    def e_part1():
        for jj in range(4): A(f"ds_read_b64 {v(XR+2*jj,2)}, {v(50+jj)}")
        spin_until(A, "stat2", lambda: A(f"v_cmp_ne_u32 vcc, {s(S_NONCE)}, v17"), lambda: A("buffer_load_dwordx2 v[16:17], v54, s[48:51], 0 offen sc1"))
        A("v_and_b32 v18, 0xffff0000, v16"); A("v_rcp_f32 v18, v18")
        A("v_lshlrev_b32 v19, 16, v16")
        A("v_mul_f32 v19, v19, v18"); A("v_mul_f32 v17, v18, v18")
        A("s_waitcnt lgkmcnt(0)")
        for jj in range(4):
            for i in range(4):
                r_ = 4*jj + i
                if (i & 1) == 0:
                    A(f"v_lshlrev_b32 v4, 16, {v(XR+2*jj+(i>>1))}"); A(f"v_lshlrev_b32 v5, 16, {v(8+2*jj+(i>>1))}")
                else:
                    A(f"v_and_b32 v4, 0xffff0000, {v(XR+2*jj+(i>>1))}"); A(f"v_and_b32 v5, 0xffff0000, {v(8+2*jj+(i>>1))}")
                A(f"v_add_f32 {v(E+r_)}, v4, v5")
                A(f"v_fma_f32 {v(6+(i&1))}, v4, v18, -v19")
                if i & 1: A(f"v_cvt_pk_bf16_f32 {v(8+2*jj+(i>>1))}, v6, v7")
    e_part1()
    A.bg_flush()
    def wreads(ks, setb):
        slot = ks % DW
        return [f"ds_read_b64_tr_b16 {v(setb+4*cht+2*hf,2)}, {v(48+cht)} offset:{slot*2048+1024*hf}" for cht in range(2) for hf in range(2)]
    for l in wreads(0, WF[0]): A(l)
    for ks in range(28):
        cur = WF[ks & 1]; nxt = WF[(ks+1) & 1]
        tags = [f"H{ks}"] + ([f"W{ks+1}"] if ks+1 < 28 else [])
        tag = min(tags, key=lambda t: A.vm_younger(t))
        A.wait_vm(tag)
        dstamp(A, f"k{ks}")
        if ks+1 < 28:
            for l in wreads(ks+1, nxt): A(l)
            A("s_waitcnt lgkmcnt(4)")
        else:
            A("s_waitcnt lgkmcnt(0)")
        nx = []
        if ks + DW < 28: nx += [lambda ks=ks: w2_dma(ks+DW, 0), lambda ks=ks: w2_dma(ks+DW, 1)]
        if ks + DH < 28: nx += [lambda ks=ks: h_load(ks+DH, 0), lambda ks=ks: h_load(ks+DH, 1)]
        mf = [f"v_mfma_f32_32x32x16_bf16 {v(GA+32*cht+16*tt,16)}, {v(cur+4*cht,4)}, {v(HS+8*(ks%DH)+4*tt,4)}, {v(GA+32*cht+16*tt,16)}" for cht in range(2) for tt in range(2)]
        A(mf[0]); A(mf[1])
        for x in nx[:2] if ks + DW < 28 else []: emit(A, x)
        A(mf[2]); A(mf[3])
        for x in (nx[2:] if ks + DW < 28 else nx): emit(A, x)
        if ks == OPT["f4set"]:
            A.wait_vm("yst")
            A("s_barrier")
            A("s_lshl_b32 s61, s2, 7"); A(f"s_add_u32 s61, s61, {F4*128}"); flag_set(A, 4)
        if ks == OPT['f4chk'] - 4:
            A(f"s_add_u32 s60, s65, {F4}"); A("s_lshl_b32 s60, s60, 7")
            A("v_and_b32 v4, 31, v1"); A("v_lshlrev_b32 v4, 10, v4"); A("v_add_u32 v4, s60, v4")
            flag_issue(A, "F4", 5, 4)
        if ks == OPT['f4chk']:
            A.wait_vm("F4")
            flag_check(A, 5, 4, "f4")
            A("v_lshrrev_b32 v6, 2, v1"); A("v_and_b32 v7, 3, v1")
            A("v_lshlrev_b32 v6, 12, v6"); A("v_lshl_add_u32 v6, v7, 4, v6")
            A("s_lshl_b32 s60, s65, 18"); A("s_lshl_b32 s61, s66, 17"); A("s_add_u32 s60, s60, s61")
            A("s_lshl_b32 s61, s64, 7"); A("s_add_u32 s60, s60, s61"); A("s_lshl_b32 s61, s67, 6"); A("s_add_u32 s60, s60, s61")
            A("v_add_u32 v6, s60, v6"); A("v_add_u32 v7, 65536, v6")
            A.vm("yt", "buffer_load_dwordx4 v[20:23], v6, s[44:47], 0 offen sc1")
            A.vm("yt", "buffer_load_dwordx4 v[56:59], v7, s[44:47], 0 offen sc1")
        if ks == 23:
            A.wait_vm("yt")
            A(f"s_add_u32 s60, s57, {G2_YT}")
            A("v_lshlrev_b32 v6, 4, v1"); A("v_add_u32 v6, s60, v6")
            A("ds_write_b128 v6, v[20:23]"); A("ds_write_b128 v6, v[56:59] offset:1024")
            A("v_and_b32 v7, 15, v1"); A("v_lshrrev_b32 v55, 2, v7"); A("v_lshl_add_u32 v55, v3, 2, v55"); A("v_lshlrev_b32 v55, 6, v55")
            A("v_bfe_u32 v54, v1, 4, 1"); A("v_lshl_add_u32 v55, v54, 5, v55"); A("v_and_b32 v54, 3, v1"); A("v_lshl_add_u32 v55, v54, 3, v55")
            A("v_add_u32 v55, s60, v55")
        if ks == 24:
            for jj in range(4): A(f"ds_read_b64_tr_b16 {v([56,58,60,62][jj],2)}, v55 offset:{512*jj}")
        if ks == 26:
            for jj in range(4):
                yr = [56, 58, 60, 62][jj]
                for i in range(4):
                    r_ = 4*jj + i
                    if (i & 1) == 0:
                        A(f"v_lshlrev_b32 v4, 16, {v(yr+(i>>1))}"); A(f"v_lshlrev_b32 v5, 16, {v(8+2*jj+(i>>1))}")
                    else:
                        A(f"v_and_b32 v4, 0xffff0000, {v(yr+(i>>1))}"); A(f"v_and_b32 v5, 0xffff0000, {v(8+2*jj+(i>>1))}")
                    A(f"v_fmac_f32 {v(E+r_)}, v4, v5")
    stamp(A, 9); dstamp(A, "g2e")
    OWN, P = 128, 144
    A("v_lshlrev_b32 v56, 4, v1"); A(f"v_add_u32 v57, {G2_XCH}, v56")
    A("s_barrier")
    A("s_nop 9")
    lj = newlabel("xj")
    for w in range(4):
        ln = newlabel("xw")
        if w < 3:
            A(f"s_cmp_eq_u32 {s(S_WAVE)}, {w}"); A(f"s_cbranch_scc0 {ln}")
        for k in range(1, 4):
            o = (w + k) & 3
            base = (o*3 + (3-k))*4096
            for jj in range(4):
                A(f"ds_write_b128 v57, {v(GA+16*o+4*jj,4)} offset:{base + 1024*jj}")
        for i in range(16): A(f"v_mov_b32 {v(OWN+i)}, {v(GA+16*w+i)}")
        if w < 3:
            A(f"s_branch {lj}")
            A.label(ln)
    A.label(lj)
    A("s_waitcnt lgkmcnt(0)"); A("s_barrier")
    A(f"s_mul_i32 s60, {s(S_WAVE)}, {3*4096}"); A("v_add_u32 v57, s60, v57")
    for k in range(3):
        for jj in range(4): A(f"ds_read_b128 {v(P+16*k+4*jj,4)}, v57 offset:{4096*k+1024*jj}")
    A("s_waitcnt lgkmcnt(8)")
    for r_ in range(16): A(f"v_add_f32 {v(OWN+r_)}, {v(OWN+r_)}, {v(P+r_)}")
    A("s_waitcnt lgkmcnt(4)")
    for r_ in range(16): A(f"v_add_f32 {v(OWN+r_)}, {v(OWN+r_)}, {v(P+16+r_)}")
    A("s_waitcnt lgkmcnt(0)")
    for jj in range(4):
        for i in range(4):
            r_ = 4*jj + i
            A(f"v_add_f32 {v(OWN+r_)}, {v(OWN+r_)}, {v(P+32+r_)}")
            A(f"v_fma_f32 {v(OWN+r_)}, {v(OWN+r_)}, v17, {v(E+r_)}")
        A(f"v_cvt_pk_bf16_f32 {v(32+2*jj)}, {v(OWN+4*jj)}, {v(OWN+4*jj+1)}")
        A(f"v_cvt_pk_bf16_f32 {v(33+2*jj)}, {v(OWN+4*jj+2)}, {v(OWN+4*jj+3)}")
        A(f"ds_write_b64 {v(50+jj)}, {v(32+2*jj,2)} offset:8192")
    A(f"s_add_u32 s60, s57, {G2_YT}"); A("v_add_u32 v11, s60, v56")
    srd(A, 56, P_OUT, S*D*2)
    A("s_waitcnt lgkmcnt(0)")
    A("ds_read_b128 v[96:99], v11"); A("ds_read_b128 v[100:103], v11 offset:1024")
    fl = " sc1" if OPT["outsc1"] else ""
    A("s_waitcnt lgkmcnt(1)")
    A("buffer_store_dwordx4 v[96:99], v26, s[56:59], 0 offen" + fl)
    A("s_waitcnt lgkmcnt(0)")
    A("buffer_store_dwordx4 v[100:103], v27, s[56:59], 0 offen" + fl)
    if STAMPS:
        A("s_waitcnt vmcnt(0)")
        A("s_memrealtime s[100:101]")
    stamp_flush(A)
    A.label("L_end")
    A("s_endpgm")
    return A

HDR = open("parallel_sum__ssm_conv_h3__dense_activation_squared_relu__prompt.s.ref").read().split("\n")[:14]
def build(path):
    name = KN + "_kernel"
    _lbl[0] = 0
    b, k = kernel_text(name, gen())
    hdr = "\n".join(HDR) + f"\n; @launch grid=(256,1,1) block=(256,1,1) lds={LDS_TOTAL}\n"
    open(path, "w").write(hdr + '.amdgcn_target "amdgcn-amd-amdhsa--gfx950"\n' + b + k)
if __name__ == "__main__":
    if "--stamps" in sys.argv: STAMPS = True; sys.argv.remove("--stamps")
    for a in list(sys.argv):
        if a.startswith("--detail="):
            STAMPS = True; DETAIL = {n: i+1 for i, n in enumerate(a[9:].split(","))}; sys.argv.remove(a)
    for a in list(sys.argv):
        if a.startswith("--opt="):
            k_, v_ = a[6:].split(":"); OPT[k_] = int(v_); sys.argv.remove(a)
    build(sys.argv[1] if len(sys.argv) > 1 else "v3.s")
```
